```python
import torch

def _softmax(x, axis=-1):
    return torch.softmax(x, dim=axis)
def _gelu(x):
    return torch.nn.functional.gelu(x, approximate="tanh")
def _silu(x):
    return torch.nn.functional.silu(x)
def _sigmoid(x):
    return torch.sigmoid(x)
def _layernorm(x, axis=-1, eps=1e-5):
    m = x.mean(dim=axis, keepdim=True)
    v = x.var(dim=axis, keepdim=True, unbiased=False)
    return (x - m) / torch.sqrt(v + eps)
def _scatter_add(tgt, idx, src, axis=0):
    return tgt.clone().index_add_(axis, idx, src)
def _segment_sum(src, seg, n):
    out = torch.zeros((n,) + src.shape[1:], dtype=src.dtype)
    return out.index_add_(0, seg, src)
def _pad(x, pw):
    flat = tuple(v for pair in reversed(pw) for v in pair)
    return torch.nn.functional.pad(x, flat)

kernel_name = 'standalone__controlnet__diffusion'

def setup_inputs():

    _w = (lambda a: (lambda t: t.to(torch.bfloat16) if t.is_floating_point() else t)(torch.as_tensor(a)))
    B, HW, C = 2, 32, 512
    sc = C ** -0.5
    return {
        "x_frozen": _w((lambda *s: torch.randn(*s, dtype=torch.bfloat16) * 0.4)(B, HW, HW, C)),
        "x": _w((lambda *s: torch.randn(*s, dtype=torch.bfloat16) * 0.8)(B, HW, HW, C)),
        "c": _w((lambda *s: torch.randn(*s, dtype=torch.bfloat16) * 1.6)(B, HW, HW, C)),
        "w_z1": _w((lambda *s: torch.randn(*s, dtype=torch.bfloat16) * 1.6)(C, C) * sc),
        "w_z2": _w((lambda *s: torch.randn(*s, dtype=torch.bfloat16) * 0.8)(C, C) * sc),
        "w_conv": _w((lambda *s: torch.randn(*s, dtype=torch.bfloat16) * 0.8)(3, 3, C, C) * sc / 3.0),
    }

def reference(x_frozen, x, c, w_z1, w_z2, w_conv):
    B, H, W, C = x.shape
    h_in = x + torch.einsum("bhwc,cd->bhwd", c, w_z1)
    h = _silu(_layernorm(h_in, axis=-1))
    hp = _pad(h, ((0, 0), (1, 1), (1, 1), (0, 0)))
    acc = h * 0.0
    for di in range(3):
        for dj in range(3):
            acc = acc + torch.einsum("bhwc,cd->bhwd", hp[:, di:di + H, dj:dj + W, :], w_conv[di, dj])
    h = h_in + acc
    return x_frozen + torch.einsum("bhwc,cd->bhwd", h, w_z2)
```

```python
import sys

HF_OFF = 0x1000
HIN_OFF = 0x300000
WF_OFF = 0x600000
ST_OFF = 0xC00000
WS_SIZE = 0x1000000
OOB = 0x40000000

OPT = dict(nt_in=True, stamps=False)


class Asm:
    def __init__(self):
        self.L = []

    def __call__(self, s):
        for line in s.strip("\n").split("\n"):
            self.L.append("  " + line.strip())

    def label(self, l):
        self.L.append(l + ":")

    def raw(self, s):
        self.L.append(s)

    def text(self):
        return "\n".join(self.L) + "\n"


def vr(b, n=4):
    if b >= 256:
        b -= 256
        return "a[%d:%d]" % (b, b + n - 1) if n > 1 else "a%d" % b
    return "v[%d:%d]" % (b, b + n - 1) if n > 1 else "v%d" % b


def srd(A, d, lo, hi, size):
    A(f"s_mov_b32 s{d}, s{lo}\ns_mov_b32 s{d+1}, s{hi}\ns_mov_b32 s{d+2}, {size:#x}\ns_mov_b32 s{d+3}, 0x20000")


class VmQ:
    def __init__(self, A):
        self.A = A
        self.n = 0
        self.done = 0
        self.tag = {}

    def issue(self, text, tag=None):
        self.A(text)
        self.n += 1
        if tag is not None:
            self.tag[tag] = self.n
        assert self.n - self.done <= 63, "vmcnt overflow"

    def need(self, *tags):
        idx = max(self.tag[t] for t in tags)
        if idx > self.done:
            self.A("s_waitcnt vmcnt(%d)" % (self.n - idx))
            self.done = idx
            return True
        return False

    def outstanding(self):
        return self.n - self.done


def gen_k2(A):
    NS = 4
    PF = 3
    ACC = 16
    STG = [96, 176, 256, 336]
    A.raw(".globl k2_kernel\n.p2align 8\n.type k2_kernel,@function")
    A.label("k2_kernel")
    A("""
    s_cmp_ge_u32 s2, 256
    s_cbranch_scc1 K2_end
    s_load_dwordx2 s[4:5], s[0:1], 64
    s_load_dwordx2 s[6:7], s[0:1], 0
    s_load_dwordx2 s[20:21], s[0:1], 48
    """)
    if OPT["stamps"]:
        A("s_memtime s[40:41]\ns_load_dwordx2 s[48:49], s[0:1], 56")
    A("""
    v_lshrrev_b32 v1, 6, v0
    v_and_b32 v0, 63, v0
    s_and_b32 s24, s2, 7
    v_readfirstlane_b32 s3, v1
    s_lshr_b32 s25, s2, 3
    s_and_b32 s26, s24, 1
    s_lshr_b32 s27, s24, 1
    s_and_b32 s28, s25, 7
    s_lshr_b32 s29, s25, 3
    s_lshl_b32 s27, s27, 2
    s_add_u32 s27, s27, s29
    s_lshl_b32 s26, s26, 5
    s_lshl_b32 s29, s28, 2
    s_add_u32 s26, s26, s29
    """)
    A(f"""
    v_lshlrev_b32 v2, 4, v0
    v_add_u32 v3, 0x1000, v2
    v_add_u32 v4, 0x2000, v2
    v_add_u32 v5, 0x400, v2
    v_add_u32 v7, 0x1400, v2
    s_cmp_eq_u32 s28, 0
    s_cselect_b32 s30, {OOB:#x}, 0
    s_cmp_eq_u32 s28, 7
    s_cselect_b32 s31, {OOB:#x}, 0
    v_add_u32 v6, s30, v2
    v_add_u32 v7, s31, v7
    s_lshl_b32 s32, s3, 9
    s_add_u32 s32, s32, s26
    s_lshl_b32 s32, s32, 10
    s_add_u32 s33, s32, {HIN_OFF:#x}
    s_add_u32 s32, s32, {HF_OFF - 1024:#x}
    s_lshl_b32 s34, s27, 5
    s_lshl_b32 s35, s3, 3
    s_add_u32 s34, s34, s35
    s_mul_i32 s34, s34, 10240
    s_add_u32 s34, s34, {WF_OFF:#x}
    """)
    A("""
    v_lshrrev_b32 v1, 2, v0
    v_lshlrev_b32 v1, 10, v1
    v_and_b32 v8, 3, v0
    v_lshlrev_b32 v8, 4, v8
    v_add_u32 v1, v1, v8
    s_add_u32 s36, s26, s3
    s_lshl_b32 s36, s36, 15
    s_lshl_b32 s37, s27, 6
    s_add_u32 s36, s36, s37
    s_add_u32 s37, s36, 0x4000
    s_waitcnt lgkmcnt(0)
    """)
    srd(A, 8, 4, 5, WS_SIZE)
    srd(A, 12, 6, 7, 0x200000)
    srd(A, 16, 20, 21, 0x200000)
    q = VmQ(A)
    names = ["A0", "B0", "A1", "B3", "A2", "B6", "A3", "A4", "A5", "B1", "B4", "B7", "B9", "Z0", "Z1", "Z2", "Z3", "B2", "B5", "B8"]
    roff = {n: 4 * i for i, n in enumerate(names)}

    def load_text(s, n):
        r = vr(STG[s % NS] + roff[n])
        k = int(n[1])
        if n[0] == "A":
            if k == 0:
                return f"buffer_load_dwordx4 {r}, v6, s[8:11], s32 offen"
            if k == 5:
                return f"buffer_load_dwordx4 {r}, v7, s[8:11], s32 offen"
            return f"buffer_load_dwordx4 {r}, v5, s[8:11], s32 offen offset:{(k-1)*1024}"
        if n[0] == "Z":
            return f"buffer_load_dwordx4 {r}, v2, s[8:11], s33 offen offset:{k*1024}"
        return f"buffer_load_dwordx4 {r}, v{2 + k // 4}, s[8:11], s34 offen offset:{(k % 4)*1024}"

    def adv():
        A("s_add_u32 s32, s32, 0x10000\ns_add_u32 s33, s33, 0x10000\ns_add_u32 s34, s34, 10240")

    for s in range(PF):
        for n in names:
            q.issue(load_text(s, n), (s, n))
        adv()
    nt = " nt" if OPT["nt_in"] else ""
    q.issue(f"buffer_load_dwordx4 v[8:11], v1, s[12:15], s36 offen{nt}", "xf0")
    q.issue(f"buffer_load_dwordx4 v[12:15], v1, s[12:15], s37 offen{nt}", "xf1")
    for i in range(80):
        A(f"v_mov_b32 v{ACC + i}, 0")
    A("s_nop 1")
    for s in range(8):
        pend = [(s + PF, n) for n in names] if s + PF < 8 else []
        base = STG[s % NS]
        seq = []
        for dj in range(3):
            for r in range(4):
                for di in range(3):
                    seq.append((r, dj, "A%d" % (r + di), "B%d" % (di * 3 + dj)))
                if dj == 1:
                    seq.append((r, dj, "Z%d" % r, "B9"))
        for (r, dj, an, bn) in seq:
            q.need((s, an), (s, bn))
            d = ACC + 20 * r + (4 - 2 * dj)
            A(f"v_mfma_f32_32x32x16_bf16 {vr(d,16)}, {vr(base+roff[an])}, {vr(base+roff[bn])}, {vr(d,16)}")
            k = 0
            while pend and q.outstanding() < 62 and k < 2:
                t = pend.pop(0)
                q.issue(load_text(*t), t)
                k += 1
                if not pend:
                    adv()
            if k == 0:
                A("s_nop 0")
        assert not pend
    A("s_nop 15")
    if OPT["stamps"]:
        A("s_memtime s[42:43]")
    for r in range(4):
        E = ACC + 20 * r
        A(f"v_add_f32 v{E+3}, v{E+3}, v{E+18}\nv_add_f32 v{E+16}, v{E+16}, v{E+1}")
        A(f"v_permlane32_swap_b32 v{E+0}, v{E+19}")
    A("s_mov_b32 exec_hi, 0")
    for r in range(4):
        E = ACC + 20 * r
        A(f"v_add_f32 v{E+17}, v{E+17}, v{E+19}")
    A("s_mov_b32 exec_hi, -1\ns_mov_b32 exec_lo, 0")
    for r in range(4):
        E = ACC + 20 * r
        A(f"v_add_f32 v{E+2}, v{E+2}, v{E+0}")
    A("s_mov_b32 exec_lo, -1")
    A("s_lshl_b32 s38, s3, 12\nv_add_u32 v96, s38, v2")
    for r in range(4):
        E = ACC + 20 * r
        for j in range(4):
            A(f"ds_write_b128 v96, v[{E+2+4*j}:{E+5+4*j}] offset:{r*16384 + j*1024}")
    A("s_lshl_b32 s38, s3, 14\nv_add_u32 v97, s38, v2")
    A("s_waitcnt lgkmcnt(0)\ns_barrier")
    for w in range(4):
        for j in range(4):
            A(f"ds_read_b128 v[{100+16*w+4*j}:{103+16*w+4*j}], v97 offset:{w*4096 + j*1024}")
    A("""
    v_and_b32 v98, 31, v0
    v_lshlrev_b32 v98, 2, v98
    v_lshrrev_b32 v99, 5, v0
    v_lshlrev_b32 v99, 11, v99
    v_add3_u32 v98, v98, v99, s38
    v_lshrrev_b32 v99, 2, v0
    v_lshlrev_b32 v99, 7, v99
    v_and_b32 v164, 3, v0
    v_lshlrev_b32 v164, 5, v164
    v_add3_u32 v99, v99, v164, s38
    s_waitcnt lgkmcnt(8)
    """)
    for i in range(16):
        A(f"v_add_f32 v{100+i}, v{100+i}, v{116+i}")
    A("s_waitcnt lgkmcnt(0)")
    for i in range(16):
        A(f"v_add_f32 v{132+i}, v{132+i}, v{148+i}")
    for i in range(16):
        A(f"v_add_f32 v{100+i}, v{100+i}, v{132+i}")
    for i in range(16):
        p, qq = i % 2, i // 2
        A(f"ds_write_b32 v98, v{100+i} offset:{(8*p + qq)*128}")
    for it in range(2):
        A(f"ds_read_b128 v[{116+8*it}:{119+8*it}], v99 offset:{it*2048}")
        A(f"ds_read_b128 v[{120+8*it}:{123+8*it}], v99 offset:{it*2048+16}")
    q.need("xf0", "xf1")
    for it in range(2):
        for d in range(4):
            x = 8 + 4 * it + d
            A(f"v_lshlrev_b32 v{132+8*it+2*d}, 16, v{x}\nv_and_b32 v{133+8*it+2*d}, 0xffff0000, v{x}")
    A("s_waitcnt lgkmcnt(0)")
    for i in range(16):
        A(f"v_add_f32 v{116+i}, v{116+i}, v{132+i}")
    for it in range(2):
        for d in range(4):
            A(f"v_cvt_pk_bf16_f32 v{148+4*it+d}, v{116+8*it+2*d}, v{117+8*it+2*d}")
    A("buffer_store_dwordx4 v[148:151], v1, s[16:19], s36 offen")
    A("buffer_store_dwordx4 v[152:155], v1, s[16:19], s37 offen")
    if OPT["stamps"]:
        A("""
        s_waitcnt vmcnt(0)
        s_memtime s[44:45]
        s_waitcnt lgkmcnt(0)
        s_cmp_ge_u32 s2, 16
        s_cbranch_scc1 K2_end
        s_cmp_lg_u32 s3, 0
        s_cbranch_scc1 K2_end
        s_sub_u32 s42, s42, s40
        s_sub_u32 s44, s44, s40
        """)
        srd(A, 52, 48, 49, 256)
        A("""
        v_mov_b32 v4, s42
        v_mov_b32 v5, s44
        v_mov_b32 v6, 0
        v_mov_b32 v7, 0
        s_lshl_b32 s17, s2, 4
        v_mov_b32 v3, s17
        s_mov_b64 exec, 1
        buffer_store_dwordx4 v[4:7], v3, s[52:55], 0 offen
        """)
    A.label("K2_end")
    A("s_endpgm")


def gen_k1(A):
    nt = " nt" if OPT["nt_in"] else ""
    A.raw(".globl k1_kernel\n.p2align 8\n.type k1_kernel,@function")
    A.label("k1_kernel")
    A("""
    s_cmp_ge_u32 s2, 200
    s_cbranch_scc1 K1_end
    s_load_dwordx4 s[4:7], s[0:1], 8
    s_load_dwordx4 s[8:11], s[0:1], 24
    s_load_dwordx2 s[12:13], s[0:1], 40
    s_load_dwordx4 s[16:19], s[0:1], 56
    """)
    if OPT["stamps"]:
        A("s_memtime s[80:81]")
    A("""
    v_lshrrev_b32 v1, 6, v0
    v_and_b32 v0, 63, v0
    s_and_b32 s24, s2, 7
    v_readfirstlane_b32 s3, v1
    s_lshr_b32 s25, s2, 3
    """)
    A("""
    v_lshlrev_b32 v2, 4, v0
    v_lshrrev_b32 v10, 3, v0
    v_and_b32 v11, 7, v0
    v_lshlrev_b32 v3, 10, v10
    v_lshl_add_u32 v3, v11, 4, v3
    v_lshrrev_b32 v12, 4, v0
    v_xor_b32 v13, v11, v12
    v_lshlrev_b32 v4, 7, v10
    v_lshl_add_u32 v4, v13, 4, v4
    """)
    A("""
    v_bfe_u32 v14, v0, 2, 2
    v_and_b32 v15, 3, v0
    v_and_b32 v16, 1, v12
    v_lshrrev_b32 v17, 5, v0
    v_and_b32 v18, 31, v0
    s_cmp_ge_u32 s25, 16
    s_cbranch_scc1 K1_F
    """)
    A("""
    s_lshl_b32 s26, s24, 1
    s_lshr_b32 s27, s25, 3
    s_add_u32 s26, s26, s27
    s_and_b32 s27, s25, 7
    s_and_b32 s28, s3, 3
    s_lshr_b32 s29, s3, 2
    s_lshl_b32 s30, s26, 2
    s_add_u32 s30, s30, s28
    """)
    A("""
    s_lshl_b32 s40, s30, 15
    s_lshl_b32 s31, s29, 9
    s_add_u32 s40, s40, s31
    s_add_u32 s41, s40, 0x2000
    s_add_u32 s42, s40, 0x4000
    s_add_u32 s43, s40, 0x6000
    """)
    A("""
    v_lshrrev_b32 v19, 2, v11
    v_xor_b32 v19, v19, v16
    v_lshlrev_b32 v6, 10, v10
    v_lshl_add_u32 v6, v19, 6, v6
    v_lshl_add_u32 v6, v15, 4, v6
    s_lshl_b32 s44, s3, 13
    s_lshl_b32 s31, s27, 7
    s_add_u32 s44, s44, s31
    s_lshl_b32 s45, s3, 10
    """)
    A("""
    s_lshl_b32 s46, s3, 12
    s_add_u32 s46, s46, 0x10000
    v_add_u32 v4, s46, v4
    v_xor_b32 v5, 64, v4
    """)
    A("""
    v_bfe_u32 v20, v18, 2, 1
    v_lshlrev_b32 v20, 4, v20
    v_and_b32 v21, 1, v18
    v_lshl_add_u32 v20, v21, 3, v20
    v_lshrrev_b32 v21, 3, v18
    v_lshl_add_u32 v20, v21, 1, v20
    v_bfe_u32 v21, v18, 1, 1
    v_add_u32 v20, v20, v21
    """)
    A("""
    v_bfe_u32 v21, v20, 1, 3
    v_xor_b32 v21, v21, v17
    v_lshlrev_b32 v22, 7, v20
    v_lshl_add_u32 v22, v21, 4, v22
    v_add_u32 v22, s46, v22
    """)
    A("""
    v_lshl_add_u32 v23, v17, 3, v14
    v_lshlrev_b32 v23, 7, v23
    v_lshl_add_u32 v23, v16, 5, v23
    v_and_b32 v24, 1, v15
    v_lshl_add_u32 v23, v24, 4, v23
    v_lshrrev_b32 v24, 1, v15
    v_lshl_add_u32 v23, v24, 3, v23
    v_lshrrev_b32 v24, 1, v14
    v_xor_b32 v24, s29, v24
    v_lshl_add_u32 v12, v24, 6, v23
    s_lshl_b32 s31, s29, 15
    v_add_u32 v12, s31, v12
    v_xor_b32 v13, 64, v12
    v_mov_b32 v8, v22
    v_xor_b32 v9, 32, v22
    v_xor_b32 v10, 64, v22
    v_xor_b32 v11, 0x60, v22
    """)
    A("""
    v_lshlrev_b32 v7, 10, v20
    v_lshl_add_u32 v7, v17, 4, v7
    s_lshl_b32 s47, s30, 15
    s_lshl_b32 s31, s27, 7
    s_add_u32 s47, s47, s31
    s_lshl_b32 s31, s29, 6
    s_add_u32 s47, s47, s31
    s_memrealtime s[70:71]
    s_waitcnt lgkmcnt(0)
    """)
    srd(A, 48, 8, 9, 0x80000)
    srd(A, 52, 6, 7, 0x200000)
    srd(A, 56, 18, 19, WS_SIZE)
    srd(A, 60, 4, 5, 0x200000)
    srd(A, 64, 16, 17, 256)
    q = VmQ(A)
    RS = 64
    XR = 128
    AC0, AC1 = 32, 48
    TF = [136, 144]
    A("""
    s_cmp_lg_u32 s3, 0
    s_cbranch_scc1 K1G_noat
    v_mov_b32 v24, s70
    v_mov_b32 v25, s71
    v_mov_b32 v26, 0
    v_mov_b32 v27, 0
    s_lshl_b32 s31, s26, 3
    v_mov_b32 v28, s31
    s_mov_b64 exec, 1
    buffer_atomic_cmpswap_x2 v[24:27], v28, s[64:67], 0 offen sc0 sc1
    s_mov_b64 exec, -1
    """)
    A.label("K1G_noat")
    for t in range(4):
        for half in range(2):
            c = 4 * half + t
            A(f"s_add_u32 m0, s45, {c*8192}\ns_add_u32 s31, s44, {c*65536}")
            q.issue("buffer_load_dwordx4 v6, s[48:51], s31 offen lds", ("T", t, half))
        for g in range(4):
            q.issue(f"buffer_load_dwordx4 {vr(RS+16*t+4*g)}, v3, s[52:55], s{40+g} offen offset:{t*128}{nt}", ("R", t, g))
    q.issue(f"buffer_load_dwordx4 {vr(XR)}, v7, s[60:63], s47 offen{nt}", "x0")
    q.issue(f"buffer_load_dwordx4 {vr(XR+4)}, v7, s[60:63], s47 offen offset:32{nt}", "x1")
    for i in range(32):
        A(f"v_mov_b32 v{AC0+i}, 0")
    for t in range(4):
        q.need(("R", t, 3))
        for g in range(4):
            A(f"ds_write_b128 v{4 + g % 2}, {vr(RS+16*t+4*g)} offset:{g*1024}")
        for s in range(4):
            A(f"ds_read_b128 {vr(RS+16*t+4*s)}, v{8+s}")
        A("s_barrier")

        def tread(s, buf):
            ks = 4 * t + s
            for ct in range(2):
                for j in range(2):
                    A(f"ds_read_b64_tr_b16 {vr(TF[buf]+4*ct+2*j, 2)}, v{12+ct} offset:{ks*2048 + j*512}")
        tread(0, 0)
        for s in range(4):
            if s < 3:
                tread(s + 1, (s + 1) % 2)
                A("s_waitcnt lgkmcnt(4)")
            else:
                A("s_waitcnt lgkmcnt(0)")
            b = TF[s % 2]
            A(f"v_mfma_f32_32x32x16_bf16 {vr(AC0,16)}, {vr(b)}, {vr(RS+16*t+4*s)}, {vr(AC0,16)}")
            A(f"v_mfma_f32_32x32x16_bf16 {vr(AC1,16)}, {vr(b+4)}, {vr(RS+16*t+4*s)}, {vr(AC1,16)}")
    if OPT["stamps"]:
        A("s_memtime s[82:83]")
    A("v_add_u32 v14, s46, v2\nv_xor_b32 v15, 0x4000, v14")
    A("s_nop 15")
    for j in range(4):
        A(f"ds_write_b128 v14, {vr(AC1+4*j)} offset:{j*1024}")
    q.need("x0", "x1")
    A("""
    s_cmp_lg_u32 s3, 0
    s_cbranch_scc1 K1G_noep
    v_or_b32 v26, v24, v25
    v_cmp_eq_u32 vcc, 0, v26
    v_mov_b32 v26, s70
    v_mov_b32 v27, s71
    v_cndmask_b32 v24, v24, v26, vcc
    v_cndmask_b32 v25, v25, v27, vcc
    v_mov_b32 v28, 0x18000
    s_mov_b64 exec, 1
    ds_write_b64 v28, v[24:25]
    s_mov_b64 exec, -1
    """)
    A.label("K1G_noep")
    A("s_waitcnt lgkmcnt(0)\ns_barrier")
    V = 64
    for j in range(4):
        A(f"ds_read_b128 {vr(80+4*j)}, v15 offset:{j*1024}")
    A("v_mov_b32 v28, 0x18000\nds_read_b64 v[26:27], v28")
    for d in range(8):
        A(f"v_lshlrev_b32 v{V+2*d}, 16, v{XR+d}\nv_and_b32 v{V+2*d+1}, 0xffff0000, v{XR+d}")
    for i in range(16):
        A(f"v_add_f32 v{V+i}, v{V+i}, v{AC0+i}")
    A("s_waitcnt lgkmcnt(0)")
    for i in range(16):
        A(f"v_add_f32 v{V+i}, v{V+i}, v{80+i}")
    for i in range(8):
        A(f"v_add_f32 v{80+i}, v{V+2*i}, v{V+2*i+1}")
    for i in range(4):
        A(f"v_add_f32 v{80+i}, v{80+i}, v{84+i}")
    A("v_add_f32 v80, v80, v82\nv_add_f32 v81, v81, v83\nv_add_f32 v80, v80, v81")
    A("v_mov_b32 v81, v80\ns_nop 1\nv_permlane32_swap_b32 v80, v81\ns_nop 1\nv_add_f32 v24, v80, v81")
    A("v_mul_f32 v82, 0xbd000000, v24")
    for d in range(8):
        A(f"v_cvt_pk_bf16_f32 v{96+d}, v{V+2*d}, v{V+2*d+1}")
    A(f"""
    s_lshl_b32 s31, s27, 2
    s_lshl_b32 s32, s29, 1
    s_add_u32 s31, s31, s32
    s_lshl_b32 s31, s31, 6
    s_add_u32 s31, s31, s30
    s_lshl_b32 s31, s31, 10
    s_add_u32 s32, s31, {HIN_OFF:#x}
    s_add_u32 s33, s32, 0x10000
    s_add_u32 s34, s31, {HF_OFF:#x}
    s_add_u32 s35, s34, 0x10000
    buffer_store_dwordx4 v[96:99], v2, s[56:59], s32 offen
    buffer_store_dwordx4 v[100:103], v2, s[56:59], s33 offen
    """)
    for i in range(16):
        A(f"v_add_f32 v{104+i}, v{V+i}, v82")
    A("v_mul_f32 v80, v104, v104\nv_mul_f32 v81, v105, v105")
    for i in range(2, 16):
        A(f"v_fmac_f32 v{80 + i % 2}, v{104+i}, v{104+i}")
    A("v_add_f32 v80, v80, v81")
    A("v_mov_b32 v81, v80\ns_nop 1\nv_permlane32_swap_b32 v80, v81\ns_nop 1\nv_add_f32 v25, v80, v81")
    A("""
    s_lshl_b32 s36, s28, 9
    s_add_u32 s36, s36, 0x18040
    v_lshlrev_b32 v29, 3, v0
    v_add_u32 v29, s36, v29
    s_cmp_eq_u32 s29, 0
    s_cbranch_scc1 K1G_c0
    ds_write_b64 v29, v[24:25]
    s_waitcnt lgkmcnt(0)
    s_barrier
    s_branch K1G_c1
    """)
    A.label("K1G_c0")
    A("""
    s_barrier
    ds_read_b64 v[80:81], v29
    s_waitcnt lgkmcnt(0)
    v_sub_f32 v82, v24, v80
    v_add_f32 v24, v24, v80
    v_add_f32 v25, v25, v81
    v_mul_f32 v82, v82, v82
    v_fmac_f32 v25, 0x3c800000, v82
    """)
    A(f"""
    s_lshl_b32 s36, s30, 12
    s_add_u32 s36, s36, {ST_OFF:#x}
    s_lshl_b32 s37, s27, 9
    s_add_u32 s37, s37, s36
    s_mov_b32 exec_hi, 0
    buffer_store_dwordx4 v[24:27], v2, s[56:59], s37 offen sc1
    s_mov_b32 exec_hi, -1
    s_mov_b32 s38, 0
    """)
    A.label("K1G_poll")
    for i in range(4):
        A(f"buffer_load_dwordx4 {vr(104+4*i)}, v2, s[56:59], s36 offen offset:{i*1024} sc1")
    A("s_waitcnt vmcnt(0)")
    for i in range(4):
        A(f"v_xor_b32 v{120+2*i}, v{106+4*i}, v26\nv_xor_b32 v{121+2*i}, v{107+4*i}, v27")
    A("""
    v_or3_b32 v120, v120, v121, v122
    v_or3_b32 v123, v123, v124, v125
    v_or3_b32 v120, v120, v126, v127
    v_or_b32 v120, v120, v123
    v_cmp_ne_u32 vcc, 0, v120
    s_nop 3
    s_cmp_eq_u64 vcc, 0
    s_cbranch_scc1 K1G_got
    s_add_u32 s38, s38, 1
    s_cmp_gt_u32 s38, 0x40000
    s_cbranch_scc1 K1G_got
    s_sleep 2
    s_branch K1G_poll
    """)
    A.label("K1G_got")
    A("""
    v_add_f32 v80, v104, v108
    v_add_f32 v81, v112, v116
    v_add_f32 v80, v80, v81
    v_mov_b32 v81, v80
    s_nop 1
    v_permlane32_swap_b32 v80, v81
    s_nop 1
    v_add_f32 v80, v80, v81
    v_mul_f32 v80, 0x3b000000, v80
    v_add_f32 v82, v105, v109
    v_add_f32 v83, v113, v117
    v_add_f32 v82, v82, v83
    """)
    A("s_mov_b32 s39, 0x3c800000")
    for i in range(4):
        A(f"v_fma_f32 v{84+i}, v{104+4*i}, s39, -v80")
    A("v_mul_f32 v84, v84, v84")
    for i in range(1, 4):
        A(f"v_fmac_f32 v84, v{84+i}, v{84+i}")
    A("""
    v_fmac_f32 v82, 0x42800000, v84
    v_mov_b32 v83, v82
    s_nop 1
    v_permlane32_swap_b32 v82, v83
    s_nop 1
    v_add_f32 v82, v82, v83
    v_mov_b32 v83, 0x3727c5ac
    v_fmac_f32 v83, 0x3b000000, v82
    v_rsq_f32 v81, v83
    s_nop 0
    ds_write_b64 v29, v[80:81]
    s_waitcnt lgkmcnt(0)
    """)
    A.label("K1G_c1")
    A("""
    s_barrier
    ds_read_b64 v[80:81], v29
    s_waitcnt lgkmcnt(0)
    v_mul_f32 v82, v80, v81
    v_mul_f32 v83, 0xbfb8aa3b, v81
    v_mul_f32 v84, 0x3fb8aa3b, v82
    """)
    for i in range(16):
        A(f"v_fma_f32 v{104+i}, v{V+i}, v83, v84")
    for i in range(16):
        A(f"v_exp_f32 v{104+i}, v{104+i}")
    for i in range(16):
        A(f"v_fma_f32 v{V+i}, v{V+i}, v81, -v82")
    for i in range(16):
        A(f"v_add_f32 v{104+i}, 1.0, v{104+i}")
    for i in range(16):
        A(f"v_rcp_f32 v{104+i}, v{104+i}")
    A("s_nop 0")
    for i in range(16):
        A(f"v_mul_f32 v{V+i}, v{V+i}, v{104+i}")
    for d in range(8):
        A(f"v_cvt_pk_bf16_f32 v{120+d}, v{V+2*d}, v{V+2*d+1}")
    A("""
    buffer_store_dwordx4 v[120:123], v2, s[56:59], s34 offen
    buffer_store_dwordx4 v[124:127], v2, s[56:59], s35 offen
    """)
    if OPT["stamps"]:
        stamp_tail(A, "G", 0)
    A("s_endpgm")

    A.label("K1_F")
    A("""
    s_mul_i32 s26, s24, 9
    s_add_u32 s26, s26, s25
    s_sub_u32 s26, s26, 16
    s_and_b32 s27, s26, 3
    s_lshr_b32 s26, s26, 2
    """)
    A("""
    s_lshl_b32 s30, s26, 8
    s_lshl_b32 s31, s3, 5
    s_add_u32 s30, s30, s31
    s_lshl_b32 s40, s30, 10
    s_add_u32 s41, s40, 0x2000
    s_add_u32 s42, s40, 0x4000
    s_add_u32 s43, s40, 0x6000
    """)
    A("""
    v_xor_b32 v19, v14, v12
    v_lshlrev_b32 v6, 10, v12
    v_lshl_add_u32 v6, v19, 6, v6
    v_lshl_add_u32 v6, v15, 4, v6
    s_lshl_b32 s44, s3, 13
    s_lshl_b32 s31, s27, 8
    s_add_u32 s44, s44, s31
    s_lshl_b32 s45, s3, 11
    s_lshl_b32 s46, s3, 12
    s_add_u32 s46, s46, 0x20000
    v_add_u32 v4, s46, v4
    v_xor_b32 v5, 64, v4
    """)
    A("""
    v_and_b32 v20, 0x13, v18
    v_bfe_u32 v21, v18, 2, 1
    v_lshl_add_u32 v20, v21, 3, v20
    v_bfe_u32 v21, v18, 3, 1
    v_lshl_add_u32 v20, v21, 2, v20
    v_bfe_u32 v21, v20, 1, 3
    v_xor_b32 v21, v21, v17
    v_lshlrev_b32 v22, 7, v20
    v_lshl_add_u32 v22, v21, 4, v22
    v_add_u32 v22, s46, v22
    """)
    A("""
    v_lshl_add_u32 v23, v17, 3, v14
    v_lshlrev_b32 v23, 8, v23
    v_lshl_add_u32 v23, v16, 5, v23
    v_lshl_add_u32 v23, v15, 3, v23
    v_lshl_add_u32 v24, v14, 6, v23
    v_xor_b32 v25, 64, v24
    v_xor_b32 v26, 0x80, v24
    v_xor_b32 v27, 0xc0, v24
    v_add_u32 v28, 0x10000, v24
    v_add_u32 v29, 0x10000, v25
    v_add_u32 v30, 0x10000, v26
    v_add_u32 v31, 0x10000, v27
    v_mov_b32 v8, v22
    v_xor_b32 v9, 32, v22
    v_xor_b32 v10, 64, v22
    v_xor_b32 v11, 0x60, v22
    s_waitcnt lgkmcnt(0)
    """)
    srd(A, 48, 10, 11, 0x80000)
    srd(A, 52, 12, 13, 4718592)
    srd(A, 56, 18, 19, WS_SIZE)
    q = VmQ(A)
    RS = 128
    AC = 32
    TF = [96, 112]
    for c in range(8):
        for i in range(2):
            A(f"s_add_u32 m0, s45, {c*16384 + i*1024}\ns_add_u32 s31, s44, {c*65536 + i*4096}")
            q.issue("buffer_load_dwordx4 v6, s[48:51], s31 offen lds", ("T", c, i))
        for g in range(4):
            q.issue(f"buffer_load_dwordx4 {vr(RS+16*c+4*g)}, v3, s[52:55], s{40+g} offen offset:{c*128}{nt}", ("R", c, g))
    for i in range(64):
        A(f"v_mov_b32 v{AC+i}, 0")
    for c in range(8):
        q.need(("R", c, 3))
        for g in range(4):
            A(f"ds_write_b128 v{4 + g % 2}, {vr(RS+16*c+4*g)} offset:{g*1024}")
        for s in range(4):
            A(f"ds_read_b128 {vr(RS+16*c+4*s)}, v{8+s}")
        A("s_barrier")

        def tread(s, buf):
            ks = 4 * c + s
            for ct in range(4):
                for j in range(2):
                    a = 24 + ct + (4 if ks >= 16 else 0)
                    A(f"ds_read_b64_tr_b16 {vr(TF[buf]+4*ct+2*j, 2)}, v{a} offset:{(ks % 16)*4096 + j*1024}")
        tread(0, 0)
        for s in range(4):
            if s < 3:
                tread(s + 1, (s + 1) % 2)
                A("s_waitcnt lgkmcnt(8)")
            else:
                A("s_waitcnt lgkmcnt(0)")
            b = TF[s % 2]
            for ct in range(4):
                A(f"v_mfma_f32_32x32x16_bf16 {vr(AC+16*ct,16)}, {vr(RS+16*c+4*s)}, {vr(b+4*ct)}, {vr(AC+16*ct,16)}")
    if OPT["stamps"]:
        A("s_memtime s[82:83]")
    A(f"""
    s_lshr_b32 s31, s30, 9
    s_bfe_u32 s32, s30, 0x50004
    s_lshl_b32 s33, s27, 7
    s_add_u32 s32, s32, s33
    s_mul_i32 s32, s32, 10
    s_add_u32 s32, s32, s31
    s_lshl_b32 s32, s32, 10
    s_add_u32 s32, s32, {WF_OFF:#x}
    """)
    A(f"""
    s_cmp_ge_u32 s26, 16
    s_cbranch_scc1 K1F_noz
    s_lshl_b32 s34, s26, 1
    s_lshr_b32 s35, s3, 2
    s_add_u32 s34, s34, s35
    s_and_b32 s35, s3, 3
    s_lshl_b32 s36, s35, 6
    v_xor_b32 v12, s36, v24
    s_lshl_b32 s36, s34, 12
    v_add_u32 v12, s36, v12
    ds_read_b64_tr_b16 v[96:97], v12
    ds_read_b64_tr_b16 v[98:99], v12 offset:1024
    s_lshl_b32 s36, s27, 2
    s_add_u32 s36, s36, s35
    s_lshl_b32 s36, s36, 5
    s_add_u32 s36, s36, s34
    s_mul_i32 s36, s36, 10240
    s_add_u32 s36, s36, {WF_OFF + 9*1024:#x}
    s_waitcnt lgkmcnt(0)
    buffer_store_dwordx4 v[96:99], v2, s[56:59], s36 offen
    """)
    A.label("K1F_noz")
    A("s_nop 15")
    for ct in range(4):
        for hf in range(2):
            o = 128 + 8 * ct + 4 * hf
            for d in range(4):
                A(f"v_cvt_pk_bf16_f32 v{o+d}, v{AC+16*ct+8*hf+2*d}, v{AC+16*ct+8*hf+2*d+1}")
            A(f"s_add_u32 s33, s32, {ct*327680 + hf*10240}")
            A(f"buffer_store_dwordx4 {vr(o)}, v2, s[56:59], s33 offen")
    if OPT["stamps"]:
        srd(A, 64, 16, 17, 256)
        stamp_tail(A, "F", 1)
    A.label("K1_end")
    A("s_endpgm")


def stamp_tail(A, tag, half):
    A(f"""
    s_waitcnt vmcnt(0)
    s_memtime s[84:85]
    s_waitcnt lgkmcnt(0)
    s_cmp_lg_u32 s3, 0
    s_cbranch_scc1 K1_end
    s_cmp_lg_u32 s25, {16*half}
    s_cbranch_scc1 K1_end
    s_cmp_ge_u32 s24, 4
    s_cbranch_scc1 K1_end
    s_sub_u32 s82, s82, s80
    s_sub_u32 s84, s84, s80
    v_mov_b32 v{4 + 2*half}, s82
    v_mov_b32 v{5 + 2*half}, s84
    v_mov_b32 v{6 - 2*half}, 0
    v_mov_b32 v{7 - 2*half}, 0
    s_lshl_b32 s31, s24, 4
    s_add_u32 s31, s31, {128 + 64*half}
    v_mov_b32 v3, s31
    s_mov_b64 exec, 1
    buffer_store_dwordx4 v[4:7], v3, s[64:67], 0 offen
    """)


def kd(A, name, vgpr, accum, sgpr=102):
    A.raw(f""".p2align 6
.amdhsa_kernel {name}
  .amdhsa_next_free_vgpr {vgpr}
  .amdhsa_next_free_sgpr {sgpr}
  .amdhsa_accum_offset {accum}
  .amdhsa_group_segment_fixed_size 0
  .amdhsa_kernarg_size 72
  .amdhsa_user_sgpr_count 2
  .amdhsa_user_sgpr_kernarg_segment_ptr 1
  .amdhsa_system_sgpr_workgroup_id_x 1
.end_amdhsa_kernel""")


def main():
    for a in sys.argv[1:]:
        k, v = a.split("=")
        OPT[k] = eval(v)
    A = Asm()
    A.raw("; @launch kernel=k1_kernel grid=(256,1,1) block=(512,1,1) lds=163840")
    A.raw("; @launch kernel=k2_kernel grid=(256,1,1) block=(256,1,1) lds=65536")
    A.raw('.amdgcn_target "amdgcn-amd-amdhsa--gfx950"')
    A.raw(".text")
    gen_k1(A)
    gen_k2(A)
    A.raw('.section .rodata,"a"')
    kd(A, "k1_kernel", 256, 256)
    kd(A, "k2_kernel", 416, 256)
    sys.stdout.write(A.text())


if __name__ == "__main__":
    main()
```

```python
import sys

HF_OFF = 0x1000
HIN_OFF = 0x300000
WF_OFF = 0x600000
ST_OFF = 0xC00000
ST2_OFF = 0xD00000
WS_SIZE = 0x1000000
OOB = 0x40000000

OPT = dict(nt_in=True, stamps=False)


class Asm:
    def __init__(self):
        self.L = []

    def __call__(self, s):
        for line in s.strip("\n").split("\n"):
            self.L.append("  " + line.strip())

    def label(self, l):
        self.L.append(l + ":")

    def raw(self, s):
        self.L.append(s)

    def text(self):
        return "\n".join(self.L) + "\n"


def vr(b, n=4):
    if b >= 256:
        b -= 256
        return "a[%d:%d]" % (b, b + n - 1) if n > 1 else "a%d" % b
    return "v[%d:%d]" % (b, b + n - 1) if n > 1 else "v%d" % b


def srd(A, d, lo, hi, size):
    A(f"s_mov_b32 s{d}, s{lo}\ns_mov_b32 s{d+1}, s{hi}\ns_mov_b32 s{d+2}, {size:#x}\ns_mov_b32 s{d+3}, 0x20000")


DBG_OFF = 0xE00000


class Stamps:
    SB = 72

    def __init__(self, A, kern):
        self.A = A
        self.kern = kern
        self.n = 0
        self.names = []

    def start(self):
        if OPT["stamps"]:
            self.A("s_memrealtime s[100:101]")
            self.stamp("start")

    def stamp(self, name):
        if OPT["stamps"]:
            assert self.n < 13
            self.A(f"s_memtime s[{self.SB+2*self.n}:{self.SB+2*self.n+1}]")
            self.n += 1
            self.names.append(name)

    def fork(self):
        o = Stamps(self.A, self.kern)
        o.n = self.n
        o.names = list(self.names)
        return o

    def flush(self, srdreg, wave_sgpr, tmpv):
        if not OPT["stamps"]:
            return
        A = self.A
        A("s_waitcnt vmcnt(0)")
        self.stamp("end")
        A("s_mov_b32 s99, s100")
        A("s_memrealtime s[100:101]")
        A("s_waitcnt lgkmcnt(0)")
        A(f"v_mov_b32 v{tmpv}, s99")
        A(f"v_mov_b32 v{tmpv+15}, s100")
        for i in range(1, 15):
            if i < self.n:
                A(f"s_sub_u32 s{self.SB+2*i}, s{self.SB+2*i}, s{self.SB}\nv_mov_b32 v{tmpv+i}, s{self.SB+2*i}")
            else:
                A(f"v_mov_b32 v{tmpv+i}, 0")
        A(f"""
        s_lshl_b32 s{self.SB}, s2, 3
        s_add_u32 s{self.SB}, s{self.SB}, s{wave_sgpr}
        s_lshl_b32 s{self.SB}, s{self.SB}, 6
        s_add_u32 s{self.SB}, s{self.SB}, {DBG_OFF + self.kern*256*8*64:#x}
        v_mov_b32 v{tmpv+16}, 0
        s_mov_b64 exec, 1
        """)
        for j in range(4):
            A(f"buffer_store_dwordx4 v[{tmpv+4*j}:{tmpv+4*j+3}], v{tmpv+16}, s[{srdreg}:{srdreg+3}], s{self.SB} offen offset:{16*j}")
        sys.stderr.write("stamps k%d: %s\n" % (self.kern, self.names))


class VmQ:
    def __init__(self, A):
        self.A = A
        self.n = 0
        self.done = 0
        self.tag = {}

    def issue(self, text, tag=None):
        self.A(text)
        self.n += 1
        if tag is not None:
            self.tag[tag] = self.n
        assert self.n - self.done <= 63, "vmcnt overflow"

    def need(self, *tags):
        idx = max(self.tag[t] for t in tags)
        if idx > self.done:
            self.A("s_waitcnt vmcnt(%d)" % (self.n - idx))
            self.done = idx
            return True
        return False

    def outstanding(self):
        return self.n - self.done


def gen_k2(A):
    NS = 2
    PF = 3
    ACC = 16
    STG = [96, 176]
    A.raw(".globl k2_kernel\n.p2align 8\n.type k2_kernel,@function")
    A.label("k2_kernel")
    A("""
    s_cmp_ge_u32 s2, 256
    s_cbranch_scc1 K2_end
    s_load_dwordx2 s[4:5], s[0:1], 64
    s_load_dwordx2 s[6:7], s[0:1], 0
    s_load_dwordx2 s[20:21], s[0:1], 48
    """)
    ST = Stamps(A, 1)
    ST.start()
    A("""
    v_lshrrev_b32 v1, 6, v0
    v_and_b32 v0, 63, v0
    s_and_b32 s24, s2, 7
    v_readfirstlane_b32 s3, v1
    s_lshr_b32 s25, s2, 3
    s_and_b32 s26, s24, 1
    s_lshr_b32 s27, s24, 1
    s_and_b32 s28, s25, 7
    s_lshr_b32 s29, s25, 3
    s_lshl_b32 s27, s27, 2
    s_add_u32 s27, s27, s29
    s_lshl_b32 s26, s26, 5
    s_lshl_b32 s29, s28, 2
    s_add_u32 s26, s26, s29
    """)
    A(f"""
    v_lshlrev_b32 v2, 4, v0
    v_add_u32 v3, 0x1000, v2
    v_add_u32 v4, 0x2000, v2
    v_add_u32 v5, 0x400, v2
    v_add_u32 v7, 0x1400, v2
    s_cmp_eq_u32 s28, 0
    s_cselect_b32 s30, {OOB:#x}, 0
    s_cmp_eq_u32 s28, 7
    s_cselect_b32 s31, {OOB:#x}, 0
    v_add_u32 v6, s30, v2
    v_add_u32 v7, s31, v7
    s_lshl_b32 s32, s3, 9
    s_add_u32 s32, s32, s26
    s_lshl_b32 s32, s32, 10
    s_add_u32 s33, s32, {HIN_OFF:#x}
    s_add_u32 s32, s32, {HF_OFF - 1024:#x}
    s_lshl_b32 s34, s27, 5
    s_lshl_b32 s35, s3, 3
    s_add_u32 s34, s34, s35
    s_mul_i32 s34, s34, 10240
    s_add_u32 s34, s34, {WF_OFF:#x}
    """)
    A("""
    v_lshrrev_b32 v1, 2, v0
    v_lshlrev_b32 v1, 10, v1
    v_and_b32 v8, 3, v0
    v_lshlrev_b32 v8, 4, v8
    v_add_u32 v1, v1, v8
    s_add_u32 s36, s26, s3
    s_lshl_b32 s36, s36, 15
    s_lshl_b32 s37, s27, 6
    s_add_u32 s36, s36, s37
    s_add_u32 s37, s36, 0x4000
    s_waitcnt lgkmcnt(0)
    """)
    srd(A, 8, 4, 5, WS_SIZE)
    srd(A, 12, 6, 7, 0x200000)
    srd(A, 16, 20, 21, 0x200000)
    q = VmQ(A)
    names = ["A0", "B0", "A1", "B3", "A2", "B6", "A3", "A4", "A5", "B1", "B4", "B7", "B9", "Z0", "Z1", "Z2", "Z3", "B2", "B5", "B8"]
    roff = {n: 4 * i for i, n in enumerate(names)}

    def load_text(s, n):
        r = vr(STG[s % NS] + roff[n])
        k = int(n[1])
        if n[0] == "A":
            if k == 0:
                return f"buffer_load_dwordx4 {r}, v6, s[8:11], s32 offen"
            if k == 5:
                return f"buffer_load_dwordx4 {r}, v7, s[8:11], s32 offen"
            return f"buffer_load_dwordx4 {r}, v5, s[8:11], s32 offen offset:{(k-1)*1024}"
        if n[0] == "Z":
            return f"buffer_load_dwordx4 {r}, v2, s[8:11], s33 offen offset:{k*1024}"
        return f"buffer_load_dwordx4 {r}, v{2 + k // 4}, s[8:11], s34 offen offset:{(k % 4)*1024}"

    def adv():
        A("s_add_u32 s32, s32, 0x10000\ns_add_u32 s33, s33, 0x10000\ns_add_u32 s34, s34, 10240")

    TD = 0
    HW = OPT.get("hw", 0)
    if HW:
        A(f"""
        s_cmp_lg_u32 s3, 4
        s_cbranch_scc1 K2_main
        s_sub_u32 s32, s32, {4*8*65536}
        s_sub_u32 s33, s33, {4*8*65536}
        s_sub_u32 s34, s34, {4*8*10240}
        s_mul_i32 s38, s28, 1280
        s_add_u32 s38, s38, s34
        s_lshr_b32 s39, s25, 3
        s_lshl_b32 s39, s39, 10
        s_add_u32 s40, s39, s32
        s_add_u32 s40, s40, 1024
        s_add_u32 s41, s39, s33
        v_and_b32 v20, 31, v0
        v_lshlrev_b32 v21, 7, v20
        v_add_u32 v21, s38, v21
        v_mov_b32 v22, 10240
        v_and_b32 v23, 7, v0
        v_lshlrev_b32 v23, 7, v23
        v_add_u32 v24, s40, v23
        v_add_u32 v23, s41, v23
        v_cmp_gt_u32 vcc, 24, v20
        s_nop 1
        v_cndmask_b32 v23, v23, v24, vcc
        v_mov_b32 v24, 0x10000
        v_cmp_gt_u32 vcc, 16, v20
        s_nop 1
        v_cndmask_b32 v16, v23, v21, vcc
        v_cndmask_b32 v17, v24, v22, vcc
        v_lshrrev_b32 v20, 5, v0
        v_lshlrev_b32 v18, 3, v17
        v_mul_u32_u24 v20, v20, v18
        v_add_u32 v16, v16, v20
        v_lshl_add_u32 v19, v18, 1, v16
        s_mov_b32 exec_lo, 0xffff03ff
        s_mov_b32 exec_hi, 0xffff03ff
        """)
        hs = OPT.get("hstart", 1)
        for _ in range(hs - 1):
            A("v_add_u32 v16, v16, v17\nv_add_u32 v19, v19, v17")
        for st in range(hs, 8):
            A("v_add_u32 v16, v16, v17\nv_add_u32 v19, v19, v17")
            A("buffer_load_dword v20, v16, s[8:11], 0 offen\nbuffer_load_dword v21, v19, s[8:11], 0 offen")
            A(f"s_waitcnt vmcnt({OPT.get('hdepth', 2)})")
        A("s_endpgm")
        A.label("K2_main")
    PFL = OPT.get("pfl", 20)
    allloads = [(s_, n) for s_ in range(8) for n in names]
    nxt = [0]

    def issue_next():
        t = allloads[nxt[0]]
        q.issue(load_text(*t), t)
        nxt[0] += 1
        if nxt[0] % 20 == 0 and nxt[0] < 160:
            adv()
    nt = " nt" if OPT["nt_in"] else ""
    for i in range(PFL):
        issue_next()
        if i < 20:
            for j in range(4):
                A(f"v_mov_b32 v{ACC + 4*i + j}, 0")
    for i in range(4 * min(PFL, 20), 80):
        A(f"v_mov_b32 v{ACC + i}, 0")
    A("s_nop 1")
    ST.stamp("issued")
    xf_done = False
    for s in range(8):
        if s in (1, 2, 4, 6):
            ST.stamp("stage%d" % s)
        base = STG[s % NS]
        seq = []
        for dj in range(3):
            for r in range(4):
                for di in range(3):
                    seq.append((r, dj, "A%d" % (r + di), "B%d" % (di * 3 + dj)))
                if dj == 1:
                    seq.append((r, dj, "Z%d" % r, "B9"))
        for mi, (r, dj, an, bn) in enumerate(seq):
            if TD and mi == 1 and s + TD < 8:
                touch()
            q.need((s, an), (s, bn))
            d = ACC + 20 * r + (4 - 2 * dj)
            if OPT.get("m16"):
                dd = ACC + 20 * r + 8 * (mi % 2)
                A(f"v_mfma_f32_16x16x32_bf16 {vr(dd,4)}, {vr(base+roff[an])}, {vr(base+roff[bn])}, {vr(dd,4)}")
                A(f"v_mfma_f32_16x16x32_bf16 {vr(dd+4,4)}, {vr(base+roff[bn])}, {vr(base+roff[an])}, {vr(dd+4,4)}")
            elif not OPT.get("nomfma"):
                A(f"v_mfma_f32_32x32x16_bf16 {vr(d,16)}, {vr(base+roff[an])}, {vr(base+roff[bn])}, {vr(d,16)}")
            tgt = min(160, PFL + s * 20 + (mi + 1) // 2)
            k = 0
            while nxt[0] < tgt:
                assert allloads[nxt[0]][0] < s + NS, "register ring overrun"
                issue_next()
                k += 1
            if nxt[0] == 160 and not xf_done:
                q.issue(f"buffer_load_dwordx4 v[8:11], v1, s[12:15], s36 offen{nt}", "xf0")
                q.issue(f"buffer_load_dwordx4 v[12:15], v1, s[12:15], s37 offen{nt}", "xf1")
                xf_done = True
                k += 1
            if k == 0:
                A("s_nop 0")
    A("s_nop 15")
    ST.stamp("loop_end")
    for r in range(4):
        E = ACC + 20 * r
        A(f"v_add_f32 v{E+3}, v{E+3}, v{E+18}\nv_add_f32 v{E+16}, v{E+16}, v{E+1}")
        A(f"v_permlane32_swap_b32 v{E+0}, v{E+19}")
    A("s_mov_b32 exec_hi, 0")
    for r in range(4):
        E = ACC + 20 * r
        A(f"v_add_f32 v{E+17}, v{E+17}, v{E+19}")
    A("s_mov_b32 exec_hi, -1\ns_mov_b32 exec_lo, 0")
    for r in range(4):
        E = ACC + 20 * r
        A(f"v_add_f32 v{E+2}, v{E+2}, v{E+0}")
    A("s_mov_b32 exec_lo, -1")
    A("s_lshl_b32 s38, s3, 12\nv_add_u32 v96, s38, v2")
    for r in range(4):
        E = ACC + 20 * r
        for j in range(4):
            A(f"ds_write_b128 v96, v[{E+2+4*j}:{E+5+4*j}] offset:{r*16384 + j*1024}")
    A("s_lshl_b32 s38, s3, 14\nv_add_u32 v97, s38, v2")
    A("s_waitcnt lgkmcnt(0)\ns_barrier")
    ST.stamp("bar")
    for w in range(4):
        for j in range(4):
            A(f"ds_read_b128 v[{100+16*w+4*j}:{103+16*w+4*j}], v97 offset:{w*4096 + j*1024}")
    A("""
    v_and_b32 v98, 31, v0
    v_lshlrev_b32 v98, 2, v98
    v_lshrrev_b32 v99, 5, v0
    v_lshlrev_b32 v99, 11, v99
    v_add3_u32 v98, v98, v99, s38
    v_lshrrev_b32 v99, 2, v0
    v_lshlrev_b32 v99, 7, v99
    v_and_b32 v164, 3, v0
    v_lshlrev_b32 v164, 5, v164
    v_add3_u32 v99, v99, v164, s38
    s_waitcnt lgkmcnt(8)
    """)
    for i in range(16):
        A(f"v_add_f32 v{100+i}, v{100+i}, v{116+i}")
    A("s_waitcnt lgkmcnt(0)")
    for i in range(16):
        A(f"v_add_f32 v{132+i}, v{132+i}, v{148+i}")
    for i in range(16):
        A(f"v_add_f32 v{100+i}, v{100+i}, v{132+i}")
    for i in range(16):
        p, qq = i % 2, i // 2
        A(f"ds_write_b32 v98, v{100+i} offset:{(8*p + qq)*128}")
    for it in range(2):
        A(f"ds_read_b128 v[{116+8*it}:{119+8*it}], v99 offset:{it*2048}")
        A(f"ds_read_b128 v[{120+8*it}:{123+8*it}], v99 offset:{it*2048+16}")
    q.need("xf0", "xf1")
    for it in range(2):
        for d in range(4):
            x = 8 + 4 * it + d
            A(f"v_lshlrev_b32 v{132+8*it+2*d}, 16, v{x}\nv_and_b32 v{133+8*it+2*d}, 0xffff0000, v{x}")
    A("s_waitcnt lgkmcnt(0)")
    for i in range(16):
        A(f"v_add_f32 v{116+i}, v{116+i}, v{132+i}")
    for it in range(2):
        for d in range(4):
            A(f"v_cvt_pk_bf16_f32 v{148+4*it+d}, v{116+8*it+2*d}, v{117+8*it+2*d}")
    A("buffer_store_dwordx4 v[148:151], v1, s[16:19], s36 offen")
    A("buffer_store_dwordx4 v[152:155], v1, s[16:19], s37 offen")
    ST.flush(8, 3, 100)
    A.label("K2_end")
    A("s_endpgm")


def gen_k1(A):
    nt = " nt" if OPT["nt_in"] else ""
    SF = OPT.get("sf", " sc1")
    TFL = OPT.get("tfl", "")
    A.raw(".globl k1_kernel\n.p2align 8\n.type k1_kernel,@function")
    A.label("k1_kernel")
    A("""
    s_cmp_ge_u32 s2, 256
    s_cbranch_scc1 K1_end
    s_load_dwordx4 s[4:7], s[0:1], 8
    s_load_dwordx4 s[8:11], s[0:1], 24
    s_load_dwordx2 s[12:13], s[0:1], 40
    s_load_dwordx4 s[16:19], s[0:1], 56
    """)
    ST0 = Stamps(A, 0)
    ST0.start()
    A("""
    v_lshrrev_b32 v1, 6, v0
    v_and_b32 v0, 63, v0
    s_and_b32 s24, s2, 7
    v_readfirstlane_b32 s3, v1
    s_lshr_b32 s25, s2, 3
    """)
    A("""
    v_lshlrev_b32 v2, 4, v0
    v_lshrrev_b32 v10, 3, v0
    v_and_b32 v11, 7, v0
    v_lshrrev_b32 v12, 4, v0
    v_xor_b32 v13, v11, v12
    v_lshlrev_b32 v3, 10, v10
    v_lshl_add_u32 v3, v13, 4, v3
    v_bfe_u32 v14, v0, 2, 2
    v_and_b32 v15, 3, v0
    v_and_b32 v16, 1, v12
    v_lshrrev_b32 v17, 5, v0
    v_and_b32 v18, 31, v0
    s_cmp_ge_u32 s25, 28
    s_cbranch_scc1 K1_Z
    s_cmp_ge_u32 s25, 16
    s_cbranch_scc1 K1_F
    """)
    if OPT.get("noG"):
        A("s_endpgm")
    D = 5
    RST, TST = 16384, 8192
    TB = D * RST
    MISC = TB + D * TST
    A("""
    s_lshl_b32 s26, s24, 1
    s_lshr_b32 s27, s25, 3
    s_add_u32 s26, s26, s27
    s_and_b32 s27, s25, 7
    s_and_b32 s28, s3, 3
    s_lshr_b32 s29, s3, 2
    s_lshl_b32 s30, s26, 2
    s_add_u32 s30, s30, s28
    """)
    A(f"""
    v_xor_b32 v4, 64, v3
    s_lshl_b32 s40, s26, 17
    s_lshl_b32 s31, s3, 14
    s_add_u32 s40, s40, s31
    s_lshl_b32 s41, s3, 11
    v_lshrrev_b32 v19, 2, v11
    v_xor_b32 v19, v19, v16
    v_lshlrev_b32 v6, 10, v10
    v_lshl_add_u32 v6, v19, 6, v6
    v_lshl_add_u32 v6, v15, 4, v6
    s_lshl_b32 s44, s3, 13
    s_lshl_b32 s31, s27, 7
    s_add_u32 s44, s44, s31
    s_lshl_b32 s45, s3, 10
    s_add_u32 s45, s45, {TB}
    s_waitcnt lgkmcnt(0)
    """)
    srd(A, 48, 8, 9, 0x80000)
    srd(A, 52, 6, 7, 0x200000)
    q = VmQ(A)

    A("""
    s_and_b32 s46, s26, 1
    s_lshl_b32 s46, s46, 2
    s_add_u32 s46, s46, s27
    """ if OPT.get("rot", 1) else "s_mov_b32 s46, 0")

    def g_dma_list(c):
        st = c % D
        L = []
        L.append((f"""
        s_add_u32 s42, s46, {c}
        s_and_b32 s42, s42, 7
        s_lshl_b32 s43, s42, 16
        s_lshl_b32 s42, s42, 7
        s_add_u32 m0, s45, {st*TST}
        s_add_u32 s31, s44, s43
        """, f"buffer_load_dwordx4 v6, s[48:51], s31 offen{TFL} lds", ("T", c)))
        L.append((f"s_add_u32 m0, s41, {st*RST}\ns_add_u32 s31, s40, s42",
                  f"buffer_load_dwordx4 v3, s[52:55], s31 offen{nt} lds", ("R", c, 0)))
        L.append((f"s_add_u32 m0, s41, {st*RST + 1024}\ns_add_u32 s31, s31, 8192",
                  f"buffer_load_dwordx4 v4, s[52:55], s31 offen{nt} lds", ("R", c, 1)))
        return L

    def emitg(e):
        A(e[0])
        q.issue(e[1], e[2])

    def g_dma(c):
        for e in g_dma_list(c):
            emitg(e)
    g_dma(0)
    if OPT.get("touch", 0):
        A(f"""
        v_lshlrev_b32 v5, 10, v0
        s_lshl_b32 s32, s27, 7
        s_cmp_ge_u32 s3, 6
        s_cbranch_scc1 K1G_t2
        s_cmp_ge_u32 s3, 2
        s_cbranch_scc1 K1G_t1
        s_lshl_b32 s31, s26, 17
        s_lshl_b32 s33, s3, 16
        s_add_u32 s31, s31, s33
        s_add_u32 s31, s31, s32
        buffer_load_dword v1, v5, s[52:55], s31 offen{nt}
        s_branch K1G_t2
        """)
        A.label("K1G_t1")
        A("""
        s_sub_u32 s31, s3, 2
        s_lshl_b32 s31, s31, 1
        s_and_b32 s33, s26, 1
        s_add_u32 s31, s31, s33
        s_lshl_b32 s31, s31, 16
        s_add_u32 s31, s31, s32
        buffer_load_dword v1, v5, s[48:51], s31 offen
        """)
        A.label("K1G_t2")
    g_dma(1)
    srd(A, 56, 18, 19, WS_SIZE)
    srd(A, 60, 4, 5, 0x200000)
    srd(A, 64, 16, 17, 256)
    A("s_memrealtime s[70:71]")
    A("""
    v_bfe_u32 v20, v18, 2, 1
    v_lshlrev_b32 v20, 4, v20
    v_and_b32 v21, 1, v18
    v_lshl_add_u32 v20, v21, 3, v20
    v_lshrrev_b32 v21, 3, v18
    v_lshl_add_u32 v20, v21, 1, v20
    v_bfe_u32 v21, v18, 1, 1
    v_add_u32 v20, v20, v21
    """)
    A("""
    v_bfe_u32 v21, v20, 1, 3
    v_xor_b32 v21, v21, v17
    v_lshlrev_b32 v22, 7, v20
    v_lshl_add_u32 v22, v21, 4, v22
    s_lshl_b32 s31, s28, 12
    v_add_u32 v24, s31, v22
    v_xor_b32 v25, 32, v24
    v_xor_b32 v26, 64, v24
    v_xor_b32 v27, 0x60, v24
    v_add_u32 v28, 0x10000, v24
    v_add_u32 v29, 0x10000, v25
    v_add_u32 v30, 0x10000, v26
    v_add_u32 v31, 0x10000, v27
    """)
    A(f"""
    v_lshl_add_u32 v23, v17, 3, v14
    v_lshlrev_b32 v23, 7, v23
    v_lshl_add_u32 v23, v16, 5, v23
    v_and_b32 v21, 1, v15
    v_lshl_add_u32 v23, v21, 4, v23
    v_lshrrev_b32 v21, 1, v15
    v_lshl_add_u32 v23, v21, 3, v23
    v_lshrrev_b32 v21, 1, v14
    v_xor_b32 v21, s29, v21
    v_lshl_add_u32 v9, v21, 6, v23
    v_add_u32 v9, {TB}, v9
    """)
    A(f"""
    v_lshrrev_b32 v7, 2, v0
    v_lshlrev_b32 v7, 10, v7
    v_lshl_add_u32 v7, v15, 4, v7
    s_lshl_b32 s39, s3, 11
    s_add_u32 s39, s39, {MISC + 4096}
    v_lshlrev_b32 v13, 6, v20
    v_lshl_add_u32 v13, v17, 4, v13
    v_add_u32 v13, s39, v13
    s_lshl_b32 s47, s30, 15
    s_lshl_b32 s31, s27, 7
    s_add_u32 s47, s47, s31
    s_lshl_b32 s31, s29, 6
    s_add_u32 s47, s47, s31
    """)
    GP = OPT.get('gp', 3)
    for c_ in range(2, GP):
        g_dma(c_)
    XR = 128
    AC0 = 32
    FR = 64
    if OPT.get("sttouch", 1):
        A(f"""
        s_cmp_lg_u32 s29, 0
        s_cbranch_scc1 K1G_nost
        s_lshl_b32 s31, s30, 12
        s_lshl_b32 s32, s27, 9
        s_add_u32 s31, s31, s32
        s_add_u32 s31, s31, {ST2_OFF:#x}
        v_lshlrev_b32 v1, 7, v15
        s_mov_b64 exec, 15
        buffer_load_dword v1, v1, s[56:59], s31 offen sc1
        s_mov_b64 exec, -1
        """)
        A.label("K1G_nost")
    A("""
    s_waitcnt lgkmcnt(0)
    s_cmp_lg_u32 s3, 0
    s_cbranch_scc1 K1G_noat
    v_mov_b32 v20, s70
    v_mov_b32 v21, s71
    v_mov_b32 v22, 0
    v_mov_b32 v23, 0
    s_lshl_b32 s31, s26, 3
    v_mov_b32 v8, s31
    s_mov_b64 exec, 1
    buffer_atomic_cmpswap_x2 v[20:23], v8, s[64:67], 0 offen sc0 sc1
    s_mov_b64 exec, -1
    """)
    A.label("K1G_noat")
    for i in range(16):
        A(f"v_mov_b32 v{AC0+i}, 0")
    ST = ST0.fork()
    ST.stamp("issued")
    FRB = [64, 96]

    def g_reads(c):
        st = c % D
        fr = FRB[c % 2]
        for s_ in range(4):
            off = st * RST
            a = 24 + s_
            if off >= 65536:
                off -= 65536
                a += 4
            A(f"ds_read_b128 {vr(fr+4*s_)}, v{a} offset:{off}")
            for j in range(2):
                A(f"ds_read_b64_tr_b16 {vr(fr+16+4*s_+2*j, 2)}, v9 offset:{st*TST + s_*2048 + j*512}")
    nxt_dma = GP
    q.need(("R", 0, 1))
    A("s_barrier")
    ST.stamp("bar0")
    g_reads(0)
    xl = [("s_mov_b32 m0, s39\ns_add_u32 s31, s47, 0x4000", f"buffer_load_dwordx4 v7, s[60:63], s47 offen{nt} lds", "x0"),
          ("s_add_u32 m0, s39, 1024\ns_nop 0", f"buffer_load_dwordx4 v7, s[60:63], s31 offen{nt} lds", "x1")]
    while nxt_dma <= D - 2:
        g_dma(nxt_dma)
        nxt_dma += 1
    for c in range(8):
        fr = FRB[c % 2]
        pend = []
        if c < 7:
            A("s_waitcnt lgkmcnt(0)")
            q.need(("R", c + 1, 1))
            A("s_barrier")
            if c in OPT.get("gst", (2,)):
                ST.stamp("bar%d" % (c + 1))
            g_reads(c + 1)
            if nxt_dma < 8 and nxt_dma <= c + D:
                pend = g_dma_list(nxt_dma)
                nxt_dma += 1
            elif xl:
                pend = xl
                xl = []
        else:
            A("s_waitcnt lgkmcnt(0)")
        for s_ in range(4):
            A(f"v_mfma_f32_32x32x16_bf16 {vr(AC0,16)}, {vr(fr+16+4*s_)}, {vr(fr+4*s_)}, {vr(AC0,16)}")
            if pend:
                emitg(pend.pop(0))
    assert nxt_dma == 8 and not xl
    ST.stamp("loop_end")
    q.need("x0", "x1")
    A(f"ds_read_b128 {vr(XR)}, v13\nds_read_b128 {vr(XR+4)}, v13 offset:32")
    V = 64
    A(f"""
    s_cmp_lg_u32 s3, 0
    s_cbranch_scc1 K1G_noep
    v_or_b32 v22, v20, v21
    v_cmp_eq_u32 vcc, 0, v22
    v_mov_b32 v22, s70
    v_mov_b32 v23, s71
    v_cndmask_b32 v20, v20, v22, vcc
    v_cndmask_b32 v21, v21, v23, vcc
    v_mov_b32 v8, {MISC}
    s_mov_b64 exec, 1
    ds_write_b64 v8, v[20:21]
    s_mov_b64 exec, -1
    """)
    A.label("K1G_noep")
    A("s_waitcnt lgkmcnt(0)")
    for d in range(8):
        A(f"v_lshlrev_b32 v{V+2*d}, 16, v{XR+d}\nv_and_b32 v{V+2*d+1}, 0xffff0000, v{XR+d}")
    for i in range(16):
        A(f"v_add_f32 v{V+i}, v{V+i}, v{AC0+i}")
    for i in range(8):
        A(f"v_add_f32 v{80+i}, v{V+2*i}, v{V+2*i+1}")
    for i in range(4):
        A(f"v_add_f32 v{80+i}, v{80+i}, v{84+i}")
    A("v_add_f32 v80, v80, v82\nv_add_f32 v81, v81, v83\nv_add_f32 v80, v80, v81")
    A("v_mov_b32 v81, v80\ns_nop 1\nv_permlane32_swap_b32 v80, v81\ns_nop 1\nv_add_f32 v24, v80, v81")
    A("v_mul_f32 v82, 0xbd000000, v24")
    for i in range(16):
        A(f"v_add_f32 v{104+i}, v{V+i}, v82")
    A("v_mul_f32 v80, v104, v104\nv_mul_f32 v81, v105, v105")
    for i in range(2, 16):
        A(f"v_fmac_f32 v{80 + i % 2}, v{104+i}, v{104+i}")
    A("v_add_f32 v80, v80, v81")
    A("v_mov_b32 v81, v80\ns_nop 1\nv_permlane32_swap_b32 v80, v81\ns_nop 1\nv_add_f32 v25, v80, v81")
    if not OPT.get("gst"):
        ST.stamp("stats")
    A(f"""
    s_lshl_b32 s31, s27, 2
    s_lshl_b32 s32, s29, 1
    s_add_u32 s31, s31, s32
    s_lshl_b32 s31, s31, 6
    s_add_u32 s31, s31, s30
    s_lshl_b32 s31, s31, 10
    s_add_u32 s32, s31, {HIN_OFF:#x}
    s_add_u32 s33, s32, 0x10000
    s_add_u32 s34, s31, {HF_OFF:#x}
    s_add_u32 s35, s34, 0x10000
    s_lshl_b32 s36, s28, 9
    s_add_u32 s36, s36, {MISC + 64}
    v_lshlrev_b32 v29, 3, v0
    v_add_u32 v29, s36, v29
    v_mov_b32 v8, {MISC}
    """)

    def hin_store():
        for d in range(8):
            A(f"v_cvt_pk_bf16_f32 v{96+d}, v{V+2*d}, v{V+2*d+1}")
        A(f"""
        buffer_store_dwordx4 v[96:99], v2, s[56:59], s32 offen{SF}
        buffer_store_dwordx4 v[100:103], v2, s[56:59], s33 offen{SF}
        """)
    A(f"""
    s_lshl_b32 s36, s30, 12
    s_add_u32 s36, s36, {ST_OFF:#x}
    s_add_u32 s69, s36, {ST2_OFF - ST_OFF:#x}
    s_cmp_eq_u32 s29, 0
    s_cbranch_scc1 K1G_c0
    s_lshl_b32 s37, s27, 9
    s_add_u32 s38, s37, s69
    s_add_u32 s37, s37, s36
    s_barrier
    ds_read_b64 v[80:81], v29
    ds_read_b64 v[26:27], v8
    s_waitcnt lgkmcnt(0)
    v_sub_f32 v82, v24, v80
    v_add_f32 v24, v24, v80
    v_add_f32 v25, v25, v81
    v_mul_f32 v82, v82, v82
    v_fmac_f32 v25, 0x3c800000, v82
    s_mov_b32 exec_hi, 0
    buffer_store_dwordx4 v[24:27], v2, s[56:59], s37 offen
    buffer_store_dwordx4 v[24:27], v2, s[56:59], s38 offen sc1
    s_mov_b32 exec_hi, -1
    """)
    hin_store()
    A("s_branch K1G_c1")
    A.label("K1G_c0")
    A(f"""
    ds_write_b64 v29, v[24:25]
    s_waitcnt lgkmcnt(0)
    s_barrier
    ds_read_b64 v[26:27], v8
    s_mov_b32 s38, 0
    s_waitcnt lgkmcnt(0)
    """)
    A.label("K1G_poll")
    for i in range(4):
        A(f"buffer_load_dwordx4 {vr(104+4*i)}, v2, s[56:59], s36 offen offset:{i*1024} sc1")
    A("s_waitcnt vmcnt(0)")
    for i in range(4):
        A(f"v_xor_b32 v{120+2*i}, v{106+4*i}, v26\nv_xor_b32 v{121+2*i}, v{107+4*i}, v27")
    A(f"""
    v_or3_b32 v120, v120, v121, v122
    v_or3_b32 v123, v123, v124, v125
    v_or3_b32 v120, v120, v126, v127
    v_or_b32 v120, v120, v123
    v_cmp_ne_u32 vcc, 0, v120
    s_nop 3
    s_cmp_eq_u64 vcc, 0
    s_cbranch_scc1 K1G_got
    s_add_u32 s38, s38, 1
    s_cmp_gt_u32 s38, 0x40000
    s_cbranch_scc1 K1G_got
    s_cmp_lt_u32 s38, {OPT.get("fastpolls", 12)}
    s_cbranch_scc1 K1G_poll
    s_mov_b32 s36, s69
    s_sleep 1
    s_branch K1G_poll
    """)
    A.label("K1G_got")
    A("""
    v_add_f32 v80, v104, v108
    v_add_f32 v81, v112, v116
    v_add_f32 v80, v80, v81
    v_mov_b32 v81, v80
    s_nop 1
    v_permlane32_swap_b32 v80, v81
    s_nop 1
    v_add_f32 v80, v80, v81
    v_mul_f32 v80, 0x3b000000, v80
    v_add_f32 v82, v105, v109
    v_add_f32 v83, v113, v117
    v_add_f32 v82, v82, v83
    """)
    A("s_mov_b32 s68, 0x3c800000")
    for i in range(4):
        A(f"v_fma_f32 v{84+i}, v{104+4*i}, s68, -v80")
    A("v_mul_f32 v84, v84, v84")
    for i in range(1, 4):
        A(f"v_fmac_f32 v84, v{84+i}, v{84+i}")
    A("""
    v_fmac_f32 v82, 0x42800000, v84
    v_mov_b32 v83, v82
    s_nop 1
    v_permlane32_swap_b32 v82, v83
    s_nop 1
    v_add_f32 v82, v82, v83
    v_mov_b32 v83, 0x3727c5ac
    v_fmac_f32 v83, 0x3b000000, v82
    v_rsq_f32 v81, v83
    s_nop 0
    ds_write_b64 v29, v[80:81]
    """)
    hin_store()
    A("s_waitcnt lgkmcnt(0)")
    A.label("K1G_c1")
    A("s_barrier")
    ST.stamp("got")
    A("""
    ds_read_b64 v[80:81], v29
    s_waitcnt lgkmcnt(0)
    v_mul_f32 v82, v80, v81
    v_mul_f32 v83, 0xbfb8aa3b, v81
    v_mul_f32 v84, 0x3fb8aa3b, v82
    """)
    for i in range(16):
        A(f"v_fma_f32 v{104+i}, v{V+i}, v83, v84")
    for i in range(16):
        A(f"v_exp_f32 v{104+i}, v{104+i}")
    for i in range(16):
        A(f"v_fma_f32 v{V+i}, v{V+i}, v81, -v82")
    for i in range(16):
        A(f"v_add_f32 v{104+i}, 1.0, v{104+i}")
    for i in range(16):
        A(f"v_rcp_f32 v{104+i}, v{104+i}")
    A("s_nop 0")
    for i in range(16):
        A(f"v_mul_f32 v{V+i}, v{V+i}, v{104+i}")
    for d in range(8):
        A(f"v_cvt_pk_bf16_f32 v{120+d}, v{V+2*d}, v{V+2*d+1}")
    A(f"""
    buffer_store_dwordx4 v[120:123], v2, s[56:59], s34 offen{SF}
    buffer_store_dwordx4 v[124:127], v2, s[56:59], s35 offen{SF}
    """)
    if not OPT.get("gst"):
        ST.stamp("stored")
    ST.flush(56, 3, 64)
    A("s_endpgm")

    A.label("K1_F")
    if OPT.get("noF"):
        A("s_endpgm")
    D = 4
    RST, TST = 24576, 16384
    TB = D * RST
    A(f"""
    s_sub_u32 s27, s25, 16
    s_mul_i32 s26, s24, 3
    s_lshr_b32 s31, s27, 2
    s_add_u32 s26, s26, s31
    s_and_b32 s27, s27, 3
    s_and_b32 s28, s3, 1
    s_lshr_b32 s29, s3, 1
    s_mul_i32 s30, s26, 192
    s_mul_i32 s31, s3, 24
    s_add_u32 s40, s30, s31
    s_lshl_b32 s40, s40, 10
    s_mul_i32 s41, s3, 3072
    s_lshl_b32 s31, s28, 6
    v_xor_b32 v3, s31, v3
    v_xor_b32 v4, 64, v3
    v_xor_b32 v19, v14, v12
    v_lshlrev_b32 v6, 10, v12
    v_lshl_add_u32 v6, v19, 6, v6
    v_lshl_add_u32 v6, v15, 4, v6
    s_lshl_b32 s44, s3, 13
    s_lshl_b32 s31, s27, 8
    s_add_u32 s44, s44, s31
    s_lshl_b32 s45, s3, 11
    s_add_u32 s45, s45, {TB}
    s_waitcnt lgkmcnt(0)
    """)
    srd(A, 48, 10, 11, 0x80000)
    srd(A, 52, 12, 13, 4718592)
    q = VmQ(A)

    A("""
    s_sub_u32 s46, s25, 16
    s_lshr_b32 s46, s46, 2
    s_mul_i32 s46, s46, 3
    s_lshl_b32 s31, s27, 1
    s_add_u32 s46, s46, s31
    """ if OPT.get("rotF", 1) == 1 else ("s_mov_b32 s46, 0" if OPT.get("rotF") == 0 else "s_and_b32 s46, s27, 1\ns_lshl_b32 s46, s46, 2"))

    def f_dma_list(c):
        st = c % D
        L = []
        for i in range(2):
            pre = f"""
            s_add_u32 s42, s46, {c}
            s_and_b32 s42, s42, 7
            s_lshl_b32 s43, s42, 16
            s_lshl_b32 s42, s42, 7
            s_add_u32 s43, s43, s44
            s_add_u32 s42, s42, s40
            """ if i == 0 else ""
            L.append((pre + f"s_add_u32 m0, s45, {st*TST + i*1024}\ns_add_u32 s31, s43, {i*4096}",
                      f"buffer_load_dwordx4 v6, s[48:51], s31 offen{TFL} lds", ("T", c, i)))
        for g in range(3):
            L.append((f"s_add_u32 m0, s41, {st*RST + g*1024}\ns_add_u32 s31, s42, {g*8192}",
                      f"buffer_load_dwordx4 v{3 + g % 2}, s[52:55], s31 offen{nt} lds", ("R", c, g)))
        return L

    def emit(e):
        A(e[0])
        q.issue(e[1], e[2])
    for e in f_dma_list(0):
        emit(e)
    srd(A, 56, 18, 19, WS_SIZE)
    A("""
    v_and_b32 v20, 0x13, v18
    v_bfe_u32 v21, v18, 2, 1
    v_lshl_add_u32 v20, v21, 3, v20
    v_bfe_u32 v21, v18, 3, 1
    v_lshl_add_u32 v20, v21, 2, v20
    v_bfe_u32 v21, v20, 1, 3
    v_xor_b32 v21, v21, v17
    v_lshlrev_b32 v22, 7, v20
    v_lshl_add_u32 v22, v21, 4, v22
    s_mul_i32 s31, s28, 12288
    v_add_u32 v24, s31, v22
    v_xor_b32 v25, 32, v24
    v_xor_b32 v26, 64, v24
    v_xor_b32 v27, 0x60, v24
    v_add_u32 v28, 0xc000, v24
    v_add_u32 v29, 0xc000, v25
    v_add_u32 v30, 0xc000, v26
    v_add_u32 v31, 0xc000, v27
    """)
    A(f"""
    v_lshl_add_u32 v23, v17, 3, v14
    v_lshlrev_b32 v23, 8, v23
    v_lshl_add_u32 v23, v16, 5, v23
    v_lshl_add_u32 v23, v15, 3, v23
    v_xor_b32 v21, s29, v14
    v_lshl_add_u32 v9, v21, 6, v23
    v_add_u32 v9, {TB}, v9
    """)
    for e in f_dma_list(1):
        emit(e)
    if OPT.get("touch", 0):
        A(f"""
        v_lshlrev_b32 v5, 10, v0
        s_cmp_ge_u32 s3, 2
        s_cbranch_scc1 K1F_t1
        s_lshr_b32 s31, s27, 1
        s_mul_i32 s31, s31, 96
        s_lshl_b32 s33, s3, 5
        s_add_u32 s31, s31, s33
        s_add_u32 s31, s31, s30
        s_lshl_b32 s31, s31, 10
        s_and_b32 s33, s27, 1
        s_lshl_b32 s33, s33, 7
        s_add_u32 s31, s31, s33
        buffer_load_dword v1, v5, s[52:55], s31 offen offset:256{nt}
        """)
        A.label("K1F_t1")
    AC = 32
    FB = [80, 96]
    for i in range(48):
        A(f"v_mov_b32 v{AC+i}, 0")
    ST = ST0.fork()
    ST.stamp("issued")

    def f_reads(kk):
        c, s_ = kk // 4, kk % 4
        st = c % D
        b = FB[kk % 2]
        a = 24 + s_ + (4 if st >= 2 else 0)
        for j in range(2):
            A(f"ds_read_b64_tr_b16 {vr(b+12+2*j, 2)}, v9 offset:{st*TST + s_*4096 + j*1024}")
        for rt in range(3):
            A(f"ds_read_b128 {vr(b+4*rt)}, v{a} offset:{(st % 2)*RST + rt*4096}")
    q.need(("R", 0, 2))
    A("s_barrier")
    ST.stamp("bar0")
    f_reads(0)
    if OPT.get("touch", 0):
        A(f"""
        s_cmp_ge_u32 s3, 3
        s_cbranch_scc1 K1F_t2
        s_lshl_b32 s31, s3, 6
        s_add_u32 s31, s31, s30
        s_lshl_b32 s31, s31, 10
        s_lshl_b32 s33, s27, 7
        s_add_u32 s31, s31, s33
        buffer_load_dword v1, v5, s[52:55], s31 offen offset:512{nt}
        """)
        A.label("K1F_t2")
    pend = f_dma_list(2) + f_dma_list(3)
    for kk in range(32):
        c, s_ = kk // 4, kk % 4
        b = FB[kk % 2]
        if s_ == 3 and c < 7:
            A("s_waitcnt lgkmcnt(0)")
            q.need(("R", c + 1, 2))
            A("s_barrier")
            if c in (0, 1, 3, 5):
                ST.stamp("bar%d" % (c + 1))
            f_reads(kk + 1)
            if c + D < 8:
                pend += f_dma_list(c + D)
        elif kk < 31:
            f_reads(kk + 1)
            A("s_waitcnt lgkmcnt(5)")
        else:
            A("s_waitcnt lgkmcnt(0)")
        for rt in range(3):
            A(f"v_mfma_f32_32x32x16_bf16 {vr(AC+16*rt,16)}, {vr(b+4*rt)}, {vr(b+12)}, {vr(AC+16*rt,16)}")
            if pend and (rt < 2 or len(pend) > 5):
                emit(pend.pop(0))
    assert not pend
    ST.stamp("loop_end")
    A(f"""
    s_mul_i32 s31, s28, 96
    s_add_u32 s30, s30, s31
    s_lshl_b32 s33, s27, 2
    s_add_u32 s33, s33, s29
    s_lshl_b32 s33, s33, 5
    """)
    for rt in range(3):
        A(f"""
        s_add_u32 s34, s30, {32*rt}
        s_lshr_b32 s31, s34, 9
        s_bfe_u32 s32, s34, 0x50004
        s_add_u32 s32, s32, s33
        s_mul_i32 s32, s32, 10
        s_add_u32 s32, s32, s31
        s_lshl_b32 s32, s32, 10
        s_add_u32 s{36+2*rt}, s32, {WF_OFF:#x}
        s_add_u32 s{37+2*rt}, s32, {WF_OFF + 10240:#x}
        """)
    for rt in range(3):
        for hf in range(2):
            o = 80 + 8 * rt + 4 * hf
            for d in range(4):
                A(f"v_cvt_pk_bf16_f32 v{o+d}, v{AC+16*rt+8*hf+2*d}, v{AC+16*rt+8*hf+2*d+1}")
            A(f"buffer_store_dwordx4 {vr(o)}, v2, s[56:59], s{36+2*rt+hf} offen{SF}")
    ST.flush(56, 3, 112)
    A("s_endpgm")

    A.label("K1_Z")
    A(f"""
    s_lshl_b32 s26, s24, 2
    s_add_u32 s26, s26, s25
    s_sub_u32 s26, s26, 28
    s_lshl_b32 s27, s3, 1
    s_and_b32 s28, s27, 3
    s_lshl_b32 s28, s28, 6
    v_xor_b32 v3, s28, v2
    v_xor_b32 v4, 64, v3
    s_lshl_b32 s29, s26, 4
    s_add_u32 s29, s29, s27
    s_lshl_b32 s29, s29, 10
    s_lshl_b32 s30, s3, 11
    v_lshl_add_u32 v23, v17, 3, v14
    v_lshlrev_b32 v23, 10, v23
    v_lshl_add_u32 v23, v16, 5, v23
    v_lshl_add_u32 v23, v15, 3, v23
    v_xor_b32 v21, s27, v14
    v_lshl_add_u32 v9, v21, 6, v23
    v_xor_b32 v8, 64, v9
    s_waitcnt lgkmcnt(0)
    """)
    srd(A, 48, 10, 11, 0x80000)
    srd(A, 56, 18, 19, WS_SIZE)
    A(f"""
    s_mov_b32 m0, s30
    s_add_u32 s31, s29, 1024
    buffer_load_dwordx4 v3, s[48:51], s29 offen lds
    s_add_u32 m0, s30, 1024
    s_lshl_b32 s32, s27, 5
    buffer_load_dwordx4 v4, s[48:51], s31 offen lds
    s_add_u32 s32, s32, s26
    s_mul_i32 s32, s32, 10240
    s_add_u32 s32, s32, {WF_OFF + 9*1024:#x}
    s_add_u32 s33, s32, 327680
    s_waitcnt vmcnt(0)
    s_barrier
    ds_read_b64_tr_b16 v[32:33], v9
    ds_read_b64_tr_b16 v[34:35], v9 offset:4096
    ds_read_b64_tr_b16 v[36:37], v8
    ds_read_b64_tr_b16 v[38:39], v8 offset:4096
    s_waitcnt lgkmcnt(2)
    buffer_store_dwordx4 v[32:35], v2, s[56:59], s32 offen{SF}
    s_waitcnt lgkmcnt(0)
    buffer_store_dwordx4 v[36:39], v2, s[56:59], s33 offen{SF}
    """)
    A.label("K1_end")
    A("s_endpgm")


def kd(A, name, vgpr, accum, sgpr=102):
    A.raw(f""".p2align 6
.amdhsa_kernel {name}
  .amdhsa_next_free_vgpr {vgpr}
  .amdhsa_next_free_sgpr {sgpr}
  .amdhsa_accum_offset {accum}
  .amdhsa_group_segment_fixed_size 0
  .amdhsa_kernarg_size 72
  .amdhsa_user_sgpr_count 2
  .amdhsa_user_sgpr_kernarg_segment_ptr 1
  .amdhsa_system_sgpr_workgroup_id_x 1
.end_amdhsa_kernel""")


def main():
    for a in sys.argv[1:]:
        k, v = a.split("=")
        OPT[k] = eval(v)
    A = Asm()
    A.raw("; @launch kernel=k1_kernel grid=(256,1,1) block=(512,1,1) lds=163840")
    for _ in range(OPT.get("k2rep", 1)):
        A.raw("; @launch kernel=k2_kernel grid=(256,1,1) block=(%d,1,1) lds=65536" % (320 if OPT.get("hw", 0) else 256))
    A.raw('.amdgcn_target "amdgcn-amd-amdhsa--gfx950"')
    A.raw(".text")
    gen_k1(A)
    gen_k2(A)
    A.raw('.section .rodata,"a"')
    kd(A, "k1_kernel", 136, 136)
    kd(A, "k2_kernel", 256, 256)
    sys.stdout.write(A.text())


if __name__ == "__main__":
    main()
```

```python
import sys

HF_OFF = 0x1000
HIN_OFF = 0x300000
WF_OFF = 0x600000
ST_OFF = 0xC00000
ST2_OFF = 0xD00000
WS_SIZE = 0x1000000
OOB = 0x40000000

OPT = dict(nt_in=True, stamps=False)


class Asm:
    def __init__(self):
        self.L = []

    def __call__(self, s):
        for line in s.strip("\n").split("\n"):
            self.L.append("  " + line.strip())

    def label(self, l):
        self.L.append(l + ":")

    def raw(self, s):
        self.L.append(s)

    def text(self):
        return "\n".join(self.L) + "\n"


def vr(b, n=4):
    if b >= 256:
        b -= 256
        return "a[%d:%d]" % (b, b + n - 1) if n > 1 else "a%d" % b
    return "v[%d:%d]" % (b, b + n - 1) if n > 1 else "v%d" % b


def srd(A, d, lo, hi, size):
    A(f"s_mov_b32 s{d}, s{lo}\ns_mov_b32 s{d+1}, s{hi}\ns_mov_b32 s{d+2}, {size:#x}\ns_mov_b32 s{d+3}, 0x20000")


DBG_OFF = 0xE00000


class Stamps:
    SB = 72

    def __init__(self, A, kern):
        self.A = A
        self.kern = kern
        self.n = 0
        self.names = []

    def start(self):
        if OPT["stamps"]:
            self.A("s_memrealtime s[100:101]")
            self.stamp("start")

    def stamp(self, name):
        if OPT["stamps"]:
            assert self.n < 13
            self.A(f"s_memtime s[{self.SB+2*self.n}:{self.SB+2*self.n+1}]")
            self.n += 1
            self.names.append(name)

    def fork(self):
        o = Stamps(self.A, self.kern)
        o.n = self.n
        o.names = list(self.names)
        return o

    def flush(self, srdreg, wave_sgpr, tmpv):
        if not OPT["stamps"]:
            return
        A = self.A
        A("s_waitcnt vmcnt(0)")
        self.stamp("end")
        A("s_mov_b32 s99, s100")
        A("s_memrealtime s[100:101]")
        A("s_waitcnt lgkmcnt(0)")
        A(f"v_mov_b32 v{tmpv}, s99")
        A(f"v_mov_b32 v{tmpv+15}, s100")
        for i in range(1, 15):
            if i < self.n:
                A(f"s_sub_u32 s{self.SB+2*i}, s{self.SB+2*i}, s{self.SB}\nv_mov_b32 v{tmpv+i}, s{self.SB+2*i}")
            else:
                A(f"v_mov_b32 v{tmpv+i}, 0")
        A(f"""
        s_lshl_b32 s{self.SB}, s2, 3
        s_add_u32 s{self.SB}, s{self.SB}, s{wave_sgpr}
        s_lshl_b32 s{self.SB}, s{self.SB}, 6
        s_add_u32 s{self.SB}, s{self.SB}, {DBG_OFF + self.kern*256*8*64:#x}
        v_mov_b32 v{tmpv+16}, 0
        s_mov_b64 exec, 1
        """)
        for j in range(4):
            A(f"buffer_store_dwordx4 v[{tmpv+4*j}:{tmpv+4*j+3}], v{tmpv+16}, s[{srdreg}:{srdreg+3}], s{self.SB} offen offset:{16*j}")
        sys.stderr.write("stamps k%d: %s\n" % (self.kern, self.names))


class VmQ:
    def __init__(self, A):
        self.A = A
        self.n = 0
        self.done = 0
        self.tag = {}

    def issue(self, text, tag=None):
        self.A(text)
        self.n += 1
        if tag is not None:
            self.tag[tag] = self.n
        assert self.n - self.done <= 63, "vmcnt overflow"

    def need(self, *tags):
        idx = max(self.tag[t] for t in tags)
        if idx > self.done:
            self.A("s_waitcnt vmcnt(%d)" % (self.n - idx))
            self.done = idx
            return True
        return False

    def outstanding(self):
        return self.n - self.done


def gen_k2(A):
    NS = 2
    PF = 3
    ACC = 16
    STG = [96, 176]
    A.raw(".globl k2_kernel\n.p2align 8\n.type k2_kernel,@function")
    A.label("k2_kernel")
    A("""
    s_cmp_ge_u32 s2, 256
    s_cbranch_scc1 K2_end
    s_load_dwordx2 s[4:5], s[0:1], 64
    s_load_dwordx2 s[6:7], s[0:1], 0
    s_load_dwordx2 s[20:21], s[0:1], 48
    """)
    ST = Stamps(A, 1)
    ST.start()
    A("""
    v_lshrrev_b32 v1, 6, v0
    v_and_b32 v0, 63, v0
    s_and_b32 s24, s2, 7
    v_readfirstlane_b32 s3, v1
    s_lshr_b32 s25, s2, 3
    s_and_b32 s26, s24, 1
    s_lshr_b32 s27, s24, 1
    s_and_b32 s28, s25, 7
    s_lshr_b32 s29, s25, 3
    s_lshl_b32 s27, s27, 2
    s_add_u32 s27, s27, s29
    s_lshl_b32 s26, s26, 5
    s_lshl_b32 s29, s28, 2
    s_add_u32 s26, s26, s29
    """)
    A(f"""
    v_lshlrev_b32 v2, 4, v0
    v_add_u32 v3, 0x1000, v2
    v_add_u32 v4, 0x2000, v2
    v_add_u32 v5, 0x400, v2
    v_add_u32 v7, 0x1400, v2
    s_cmp_eq_u32 s28, 0
    s_cselect_b32 s30, {OOB:#x}, 0
    s_cmp_eq_u32 s28, 7
    s_cselect_b32 s31, {OOB:#x}, 0
    v_add_u32 v6, s30, v2
    v_add_u32 v7, s31, v7
    s_lshl_b32 s32, s3, 9
    s_add_u32 s32, s32, s26
    s_lshl_b32 s32, s32, 10
    s_add_u32 s33, s32, {HIN_OFF:#x}
    s_add_u32 s32, s32, {HF_OFF - 1024:#x}
    s_lshl_b32 s34, s27, 5
    s_lshl_b32 s35, s3, 3
    s_add_u32 s34, s34, s35
    s_mul_i32 s34, s34, 10240
    s_add_u32 s34, s34, {WF_OFF:#x}
    """)
    A("""
    v_lshrrev_b32 v1, 2, v0
    v_lshlrev_b32 v1, 10, v1
    v_and_b32 v8, 3, v0
    v_lshlrev_b32 v8, 4, v8
    v_add_u32 v1, v1, v8
    s_add_u32 s36, s26, s3
    s_lshl_b32 s36, s36, 15
    s_lshl_b32 s37, s27, 6
    s_add_u32 s36, s36, s37
    s_add_u32 s37, s36, 0x4000
    s_waitcnt lgkmcnt(0)
    """)
    srd(A, 8, 4, 5, WS_SIZE)
    srd(A, 12, 6, 7, 0x200000)
    srd(A, 16, 20, 21, 0x200000)
    q = VmQ(A)
    names = ["A0", "B0", "A1", "B3", "A2", "B6", "A3", "A4", "A5", "B1", "B4", "B7", "B9", "Z0", "Z1", "Z2", "Z3", "B2", "B5", "B8"]
    roff = {n: 4 * i for i, n in enumerate(names)}

    def load_text(s, n):
        r = vr(STG[s % NS] + roff[n])
        k = int(n[1])
        if n[0] == "A":
            if k == 0:
                return f"buffer_load_dwordx4 {r}, v6, s[8:11], s32 offen"
            if k == 5:
                return f"buffer_load_dwordx4 {r}, v7, s[8:11], s32 offen"
            return f"buffer_load_dwordx4 {r}, v5, s[8:11], s32 offen offset:{(k-1)*1024}"
        if n[0] == "Z":
            return f"buffer_load_dwordx4 {r}, v2, s[8:11], s33 offen offset:{k*1024}"
        return f"buffer_load_dwordx4 {r}, v{2 + k // 4}, s[8:11], s34 offen offset:{(k % 4)*1024}"

    def adv():
        A("s_add_u32 s32, s32, 0x10000\ns_add_u32 s33, s33, 0x10000\ns_add_u32 s34, s34, 10240")

    TD = 0
    HW = OPT.get("hw", 0)
    if HW:
        A(f"""
        s_cmp_lg_u32 s3, 4
        s_cbranch_scc1 K2_main
        s_sub_u32 s32, s32, {4*8*65536}
        s_sub_u32 s33, s33, {4*8*65536}
        s_sub_u32 s34, s34, {4*8*10240}
        s_mul_i32 s38, s28, 1280
        s_add_u32 s38, s38, s34
        s_lshr_b32 s39, s25, 3
        s_lshl_b32 s39, s39, 10
        s_add_u32 s40, s39, s32
        s_add_u32 s40, s40, 1024
        s_add_u32 s41, s39, s33
        v_and_b32 v20, 31, v0
        v_lshlrev_b32 v21, 7, v20
        v_add_u32 v21, s38, v21
        v_mov_b32 v22, 10240
        v_and_b32 v23, 7, v0
        v_lshlrev_b32 v23, 7, v23
        v_add_u32 v24, s40, v23
        v_add_u32 v23, s41, v23
        v_cmp_gt_u32 vcc, 24, v20
        s_nop 1
        v_cndmask_b32 v23, v23, v24, vcc
        v_mov_b32 v24, 0x10000
        v_cmp_gt_u32 vcc, 16, v20
        s_nop 1
        v_cndmask_b32 v16, v23, v21, vcc
        v_cndmask_b32 v17, v24, v22, vcc
        v_lshrrev_b32 v20, 5, v0
        v_lshlrev_b32 v18, 3, v17
        v_mul_u32_u24 v20, v20, v18
        v_add_u32 v16, v16, v20
        v_lshl_add_u32 v19, v18, 1, v16
        s_mov_b32 exec_lo, 0xffff03ff
        s_mov_b32 exec_hi, 0xffff03ff
        """)
        hs = OPT.get("hstart", 1)
        for _ in range(hs - 1):
            A("v_add_u32 v16, v16, v17\nv_add_u32 v19, v19, v17")
        for st in range(hs, 8):
            A("v_add_u32 v16, v16, v17\nv_add_u32 v19, v19, v17")
            A("buffer_load_dword v20, v16, s[8:11], 0 offen\nbuffer_load_dword v21, v19, s[8:11], 0 offen")
            A(f"s_waitcnt vmcnt({OPT.get('hdepth', 2)})")
        A("s_endpgm")
        A.label("K2_main")
    PFL = OPT.get("pfl", 20)
    allloads = [(s_, n) for s_ in range(8) for n in names]
    nxt = [0]

    def issue_next():
        t = allloads[nxt[0]]
        q.issue(load_text(*t), t)
        nxt[0] += 1
        if nxt[0] % 20 == 0 and nxt[0] < 160:
            adv()
    nt = " nt" if OPT["nt_in"] else ""
    for i in range(PFL):
        issue_next()
        if i < 20:
            for j in range(4):
                A(f"v_mov_b32 v{ACC + 4*i + j}, 0")
    for i in range(4 * min(PFL, 20), 80):
        A(f"v_mov_b32 v{ACC + i}, 0")
    A("s_nop 1")
    ST.stamp("issued")
    xf_done = False
    for s in range(8):
        if s in (1, 2, 4, 6):
            ST.stamp("stage%d" % s)
        base = STG[s % NS]
        seq = []
        for dj in range(3):
            for r in range(4):
                for di in range(3):
                    seq.append((r, dj, "A%d" % (r + di), "B%d" % (di * 3 + dj)))
                if dj == 1:
                    seq.append((r, dj, "Z%d" % r, "B9"))
        for mi, (r, dj, an, bn) in enumerate(seq):
            if TD and mi == 1 and s + TD < 8:
                touch()
            q.need((s, an), (s, bn))
            d = ACC + 20 * r + (4 - 2 * dj)
            if OPT.get("m16"):
                dd = ACC + 20 * r + 8 * (mi % 2)
                A(f"v_mfma_f32_16x16x32_bf16 {vr(dd,4)}, {vr(base+roff[an])}, {vr(base+roff[bn])}, {vr(dd,4)}")
                A(f"v_mfma_f32_16x16x32_bf16 {vr(dd+4,4)}, {vr(base+roff[bn])}, {vr(base+roff[an])}, {vr(dd+4,4)}")
            elif not OPT.get("nomfma"):
                A(f"v_mfma_f32_32x32x16_bf16 {vr(d,16)}, {vr(base+roff[an])}, {vr(base+roff[bn])}, {vr(d,16)}")
            tgt = min(160, PFL + s * 20 + (mi + 1) // 2)
            k = 0
            while nxt[0] < tgt:
                assert allloads[nxt[0]][0] < s + NS, "register ring overrun"
                issue_next()
                k += 1
            if nxt[0] == 160 and not xf_done:
                q.issue(f"buffer_load_dwordx4 v[8:11], v1, s[12:15], s36 offen{nt}", "xf0")
                q.issue(f"buffer_load_dwordx4 v[12:15], v1, s[12:15], s37 offen{nt}", "xf1")
                xf_done = True
                k += 1
            if k == 0:
                A("s_nop 0")
    A("s_nop 15")
    ST.stamp("loop_end")
    for r in range(4):
        E = ACC + 20 * r
        A(f"v_add_f32 v{E+3}, v{E+3}, v{E+18}\nv_add_f32 v{E+16}, v{E+16}, v{E+1}")
        A(f"v_permlane32_swap_b32 v{E+0}, v{E+19}")
    A("s_mov_b32 exec_hi, 0")
    for r in range(4):
        E = ACC + 20 * r
        A(f"v_add_f32 v{E+17}, v{E+17}, v{E+19}")
    A("s_mov_b32 exec_hi, -1\ns_mov_b32 exec_lo, 0")
    for r in range(4):
        E = ACC + 20 * r
        A(f"v_add_f32 v{E+2}, v{E+2}, v{E+0}")
    A("s_mov_b32 exec_lo, -1")
    A("s_lshl_b32 s38, s3, 12\nv_add_u32 v96, s38, v2")
    for r in range(4):
        E = ACC + 20 * r
        for j in range(4):
            A(f"ds_write_b128 v96, v[{E+2+4*j}:{E+5+4*j}] offset:{r*16384 + j*1024}")
    A("s_lshl_b32 s38, s3, 14\nv_add_u32 v97, s38, v2")
    A("s_waitcnt lgkmcnt(0)\ns_barrier")
    ST.stamp("bar")
    for w in range(4):
        for j in range(4):
            A(f"ds_read_b128 v[{100+16*w+4*j}:{103+16*w+4*j}], v97 offset:{w*4096 + j*1024}")
    A("""
    v_and_b32 v98, 31, v0
    v_lshlrev_b32 v98, 2, v98
    v_lshrrev_b32 v99, 5, v0
    v_lshlrev_b32 v99, 11, v99
    v_add3_u32 v98, v98, v99, s38
    v_lshrrev_b32 v99, 2, v0
    v_lshlrev_b32 v99, 7, v99
    v_and_b32 v164, 3, v0
    v_lshlrev_b32 v164, 5, v164
    v_add3_u32 v99, v99, v164, s38
    s_waitcnt lgkmcnt(8)
    """)
    for i in range(16):
        A(f"v_add_f32 v{100+i}, v{100+i}, v{116+i}")
    A("s_waitcnt lgkmcnt(0)")
    for i in range(16):
        A(f"v_add_f32 v{132+i}, v{132+i}, v{148+i}")
    for i in range(16):
        A(f"v_add_f32 v{100+i}, v{100+i}, v{132+i}")
    for i in range(16):
        p, qq = i % 2, i // 2
        A(f"ds_write_b32 v98, v{100+i} offset:{(8*p + qq)*128}")
    for it in range(2):
        A(f"ds_read_b128 v[{116+8*it}:{119+8*it}], v99 offset:{it*2048}")
        A(f"ds_read_b128 v[{120+8*it}:{123+8*it}], v99 offset:{it*2048+16}")
    q.need("xf0", "xf1")
    for it in range(2):
        for d in range(4):
            x = 8 + 4 * it + d
            A(f"v_lshlrev_b32 v{132+8*it+2*d}, 16, v{x}\nv_and_b32 v{133+8*it+2*d}, 0xffff0000, v{x}")
    A("s_waitcnt lgkmcnt(0)")
    for i in range(16):
        A(f"v_add_f32 v{116+i}, v{116+i}, v{132+i}")
    for it in range(2):
        for d in range(4):
            A(f"v_cvt_pk_bf16_f32 v{148+4*it+d}, v{116+8*it+2*d}, v{117+8*it+2*d}")
    A("buffer_store_dwordx4 v[148:151], v1, s[16:19], s36 offen")
    A("buffer_store_dwordx4 v[152:155], v1, s[16:19], s37 offen")
    ST.flush(8, 3, 100)
    if OPT.get("dbgout"):
        A(f"""
        s_cmp_lg_u32 s2, 0
        s_cbranch_scc1 K2_end
        s_cmp_lg_u32 s3, 0
        s_cbranch_scc1 K2_end
        s_load_dwordx2 s[40:41], s[0:1], 56
        v_mov_b32 v130, 0
        s_mov_b32 s44, {DBG_OFF:#x}
        s_mov_b32 s45, {DBG_OFF + 128*8*64:#x}
        buffer_load_dword v120, v130, s[8:11], s44 offen
        buffer_load_dword v121, v130, s[8:11], s44 offen offset:60
        buffer_load_dword v122, v130, s[8:11], s45 offen
        buffer_load_dword v123, v130, s[8:11], s45 offen offset:60
        buffer_load_dword v124, v130, s[8:11], s44 offen offset:32
        buffer_load_dword v125, v130, s[8:11], s45 offen offset:32
        buffer_load_dword v126, v130, s[8:11], s44 offen offset:8
        buffer_load_dword v127, v130, s[8:11], s45 offen offset:8
        s_waitcnt vmcnt(0) lgkmcnt(0)
        """)
        srd(A, 52, 40, 41, 256)
        A("""
        v_sub_u32 v121, v121, v120
        v_sub_u32 v122, v122, v120
        v_sub_u32 v123, v123, v120
        v_sub_u32 v128, v100, v120
        v_sub_u32 v129, v115, v120
        v_mov_b32 v120, v108
        v_mov_b32 v131, v101
        s_nop 1
        buffer_store_dwordx4 v[120:123], v130, s[52:55], 0 offen
        buffer_store_dwordx4 v[124:127], v130, s[52:55], 0 offen offset:16
        buffer_store_dwordx4 v[128:131], v130, s[52:55], 0 offen offset:32
        """)
    A.label("K2_end")
    A("s_endpgm")


def gen_k1(A):
    nt = " nt" if OPT["nt_in"] else ""
    SF = OPT.get("sf", " sc1")
    TFL = OPT.get("tfl", "")
    A.raw(".globl k1_kernel\n.p2align 8\n.type k1_kernel,@function")
    A.label("k1_kernel")
    A("""
    s_cmp_ge_u32 s2, 256
    s_cbranch_scc1 K1_end
    s_load_dwordx4 s[4:7], s[0:1], 8
    s_load_dwordx4 s[8:11], s[0:1], 24
    s_load_dwordx2 s[12:13], s[0:1], 40
    s_load_dwordx4 s[16:19], s[0:1], 56
    """)
    ST0 = Stamps(A, 0)
    ST0.start()
    A("""
    v_lshrrev_b32 v1, 6, v0
    v_and_b32 v0, 63, v0
    s_and_b32 s24, s2, 7
    v_readfirstlane_b32 s3, v1
    s_lshr_b32 s25, s2, 3
    """)
    A("""
    v_lshlrev_b32 v2, 4, v0
    v_lshrrev_b32 v10, 3, v0
    v_and_b32 v11, 7, v0
    v_lshrrev_b32 v12, 4, v0
    v_xor_b32 v13, v11, v12
    v_lshlrev_b32 v3, 10, v10
    v_lshl_add_u32 v3, v13, 4, v3
    v_bfe_u32 v14, v0, 2, 2
    v_and_b32 v15, 3, v0
    v_and_b32 v16, 1, v12
    v_lshrrev_b32 v17, 5, v0
    v_and_b32 v18, 31, v0
    s_cmp_ge_u32 s25, 28
    s_cbranch_scc1 K1_Z
    s_cmp_ge_u32 s25, 16
    s_cbranch_scc1 K1_F
    """)
    if OPT.get("noG"):
        A("s_endpgm")
    D = 5
    RST, TST = 16384, 8192
    TB = D * RST
    MISC = TB + D * TST
    A("""
    s_lshl_b32 s26, s24, 1
    s_lshr_b32 s27, s25, 3
    s_add_u32 s26, s26, s27
    s_and_b32 s27, s25, 7
    s_and_b32 s28, s3, 3
    s_lshr_b32 s29, s3, 2
    s_lshl_b32 s30, s26, 2
    s_add_u32 s30, s30, s28
    """)
    A(f"""
    v_xor_b32 v4, 64, v3
    s_lshl_b32 s40, s26, 17
    s_lshl_b32 s31, s3, 14
    s_add_u32 s40, s40, s31
    s_lshl_b32 s41, s3, 11
    v_lshrrev_b32 v19, 2, v11
    v_xor_b32 v19, v19, v16
    v_lshlrev_b32 v6, 10, v10
    v_lshl_add_u32 v6, v19, 6, v6
    v_lshl_add_u32 v6, v15, 4, v6
    s_lshl_b32 s44, s3, 13
    s_lshl_b32 s31, s27, 7
    s_add_u32 s44, s44, s31
    s_lshl_b32 s45, s3, 10
    s_add_u32 s45, s45, {TB}
    s_waitcnt lgkmcnt(0)
    """)
    srd(A, 48, 8, 9, 0x80000)
    srd(A, 52, 6, 7, 0x200000)
    q = VmQ(A)

    A("""
    s_and_b32 s46, s26, 1
    s_lshl_b32 s46, s46, 2
    s_add_u32 s46, s46, s27
    """ if OPT.get("rot", 1) else "s_mov_b32 s46, 0")

    def g_dma_list(c):
        st = c % D
        L = []
        L.append((f"""
        s_add_u32 s42, s46, {c}
        s_and_b32 s42, s42, 7
        s_lshl_b32 s43, s42, 16
        s_lshl_b32 s42, s42, 7
        s_add_u32 m0, s45, {st*TST}
        s_add_u32 s31, s44, s43
        """, f"buffer_load_dwordx4 v6, s[48:51], s31 offen{TFL} lds", ("T", c)))
        L.append((f"s_add_u32 m0, s41, {st*RST}\ns_add_u32 s31, s40, s42",
                  f"buffer_load_dwordx4 v3, s[52:55], s31 offen{nt} lds", ("R", c, 0)))
        L.append((f"s_add_u32 m0, s41, {st*RST + 1024}\ns_add_u32 s31, s31, 8192",
                  f"buffer_load_dwordx4 v4, s[52:55], s31 offen{nt} lds", ("R", c, 1)))
        return L

    def emitg(e):
        A(e[0])
        q.issue(e[1], e[2])

    def g_dma(c):
        for e in g_dma_list(c):
            emitg(e)
    g_dma(0)
    if OPT.get("touch", 0):
        A(f"""
        v_lshlrev_b32 v5, 10, v0
        s_lshl_b32 s32, s27, 7
        s_cmp_ge_u32 s3, 6
        s_cbranch_scc1 K1G_t2
        s_cmp_ge_u32 s3, 2
        s_cbranch_scc1 K1G_t1
        s_lshl_b32 s31, s26, 17
        s_lshl_b32 s33, s3, 16
        s_add_u32 s31, s31, s33
        s_add_u32 s31, s31, s32
        buffer_load_dword v1, v5, s[52:55], s31 offen{nt}
        s_branch K1G_t2
        """)
        A.label("K1G_t1")
        A("""
        s_sub_u32 s31, s3, 2
        s_lshl_b32 s31, s31, 1
        s_and_b32 s33, s26, 1
        s_add_u32 s31, s31, s33
        s_lshl_b32 s31, s31, 16
        s_add_u32 s31, s31, s32
        buffer_load_dword v1, v5, s[48:51], s31 offen
        """)
        A.label("K1G_t2")
    g_dma(1)
    srd(A, 56, 18, 19, WS_SIZE)
    srd(A, 60, 4, 5, 0x200000)
    srd(A, 64, 16, 17, 256)
    A("s_memrealtime s[70:71]")
    A("""
    v_bfe_u32 v20, v18, 2, 1
    v_lshlrev_b32 v20, 4, v20
    v_and_b32 v21, 1, v18
    v_lshl_add_u32 v20, v21, 3, v20
    v_lshrrev_b32 v21, 3, v18
    v_lshl_add_u32 v20, v21, 1, v20
    v_bfe_u32 v21, v18, 1, 1
    v_add_u32 v20, v20, v21
    """)
    A("""
    v_bfe_u32 v21, v20, 1, 3
    v_xor_b32 v21, v21, v17
    v_lshlrev_b32 v22, 7, v20
    v_lshl_add_u32 v22, v21, 4, v22
    s_lshl_b32 s31, s28, 12
    v_add_u32 v24, s31, v22
    v_xor_b32 v25, 32, v24
    v_xor_b32 v26, 64, v24
    v_xor_b32 v27, 0x60, v24
    v_add_u32 v28, 0x10000, v24
    v_add_u32 v29, 0x10000, v25
    v_add_u32 v30, 0x10000, v26
    v_add_u32 v31, 0x10000, v27
    """)
    A(f"""
    v_lshl_add_u32 v23, v17, 3, v14
    v_lshlrev_b32 v23, 7, v23
    v_lshl_add_u32 v23, v16, 5, v23
    v_and_b32 v21, 1, v15
    v_lshl_add_u32 v23, v21, 4, v23
    v_lshrrev_b32 v21, 1, v15
    v_lshl_add_u32 v23, v21, 3, v23
    v_lshrrev_b32 v21, 1, v14
    v_xor_b32 v21, s29, v21
    v_lshl_add_u32 v9, v21, 6, v23
    v_add_u32 v9, {TB}, v9
    """)
    A(f"""
    v_lshrrev_b32 v7, 2, v0
    v_lshlrev_b32 v7, 10, v7
    v_lshl_add_u32 v7, v15, 4, v7
    s_lshl_b32 s39, s3, 11
    s_add_u32 s39, s39, {MISC + 4096}
    v_lshlrev_b32 v13, 6, v20
    v_lshl_add_u32 v13, v17, 4, v13
    v_add_u32 v13, s39, v13
    s_lshl_b32 s47, s30, 15
    s_lshl_b32 s31, s27, 7
    s_add_u32 s47, s47, s31
    s_lshl_b32 s31, s29, 6
    s_add_u32 s47, s47, s31
    """)
    GP = OPT.get('gp', 3)
    for c_ in range(2, GP):
        g_dma(c_)
    XR = 128
    AC0 = 32
    FR = 64
    if OPT.get("sttouch", 1):
        A(f"""
        s_cmp_lg_u32 s29, 0
        s_cbranch_scc1 K1G_nost
        s_lshl_b32 s31, s30, 12
        s_lshl_b32 s32, s27, 9
        s_add_u32 s31, s31, s32
        s_add_u32 s31, s31, {ST2_OFF:#x}
        v_lshlrev_b32 v1, 7, v15
        s_mov_b64 exec, 15
        buffer_load_dword v1, v1, s[56:59], s31 offen sc1
        s_mov_b64 exec, -1
        """)
        A.label("K1G_nost")
    A("""
    s_waitcnt lgkmcnt(0)
    s_cmp_lg_u32 s3, 0
    s_cbranch_scc1 K1G_noat
    v_mov_b32 v20, s70
    v_mov_b32 v21, s71
    v_mov_b32 v22, 0
    v_mov_b32 v23, 0
    s_lshl_b32 s31, s26, 3
    v_mov_b32 v8, s31
    s_mov_b64 exec, 1
    buffer_atomic_cmpswap_x2 v[20:23], v8, s[64:67], 0 offen sc0 sc1
    s_mov_b64 exec, -1
    """)
    A.label("K1G_noat")
    for i in range(16):
        A(f"v_mov_b32 v{AC0+i}, 0")
    ST = ST0.fork()
    ST.stamp("issued")
    FRB = [64, 96]

    def g_reads(c):
        st = c % D
        fr = FRB[c % 2]
        for s_ in range(4):
            off = st * RST
            a = 24 + s_
            if off >= 65536:
                off -= 65536
                a += 4
            A(f"ds_read_b128 {vr(fr+4*s_)}, v{a} offset:{off}")
            for j in range(2):
                A(f"ds_read_b64_tr_b16 {vr(fr+16+4*s_+2*j, 2)}, v9 offset:{st*TST + s_*2048 + j*512}")
    nxt_dma = GP
    q.need(("R", 0, 1))
    A("s_barrier")
    ST.stamp("bar0")
    g_reads(0)
    xl = [("s_mov_b32 m0, s39\ns_add_u32 s31, s47, 0x4000", f"buffer_load_dwordx4 v7, s[60:63], s47 offen{nt} lds", "x0"),
          ("s_add_u32 m0, s39, 1024\ns_nop 0", f"buffer_load_dwordx4 v7, s[60:63], s31 offen{nt} lds", "x1")]
    while nxt_dma <= D - 2:
        g_dma(nxt_dma)
        nxt_dma += 1
    for c in range(8):
        fr = FRB[c % 2]
        pend = []
        if c < 7:
            A("s_waitcnt lgkmcnt(0)")
            q.need(("R", c + 1, 1))
            A("s_barrier")
            if c in OPT.get("gst", (2,)):
                ST.stamp("bar%d" % (c + 1))
            g_reads(c + 1)
            if nxt_dma < 8 and nxt_dma <= c + D:
                pend = g_dma_list(nxt_dma)
                nxt_dma += 1
            elif xl:
                pend = xl
                xl = []
        else:
            A("s_waitcnt lgkmcnt(0)")
        for s_ in range(4):
            A(f"v_mfma_f32_32x32x16_bf16 {vr(AC0,16)}, {vr(fr+16+4*s_)}, {vr(fr+4*s_)}, {vr(AC0,16)}")
            if pend:
                emitg(pend.pop(0))
    assert nxt_dma == 8 and not xl
    ST.stamp("loop_end")
    q.need("x0", "x1")
    A(f"ds_read_b128 {vr(XR)}, v13\nds_read_b128 {vr(XR+4)}, v13 offset:32")
    V = 64
    A(f"""
    s_cmp_lg_u32 s3, 0
    s_cbranch_scc1 K1G_noep
    v_or_b32 v22, v20, v21
    v_cmp_eq_u32 vcc, 0, v22
    v_mov_b32 v22, s70
    v_mov_b32 v23, s71
    v_cndmask_b32 v20, v20, v22, vcc
    v_cndmask_b32 v21, v21, v23, vcc
    v_mov_b32 v8, {MISC}
    s_mov_b64 exec, 1
    ds_write_b64 v8, v[20:21]
    s_mov_b64 exec, -1
    """)
    A.label("K1G_noep")
    A("s_waitcnt lgkmcnt(0)")
    for d in range(8):
        A(f"v_lshlrev_b32 v{V+2*d}, 16, v{XR+d}\nv_and_b32 v{V+2*d+1}, 0xffff0000, v{XR+d}")
    for i in range(16):
        A(f"v_add_f32 v{V+i}, v{V+i}, v{AC0+i}")
    for i in range(8):
        A(f"v_add_f32 v{80+i}, v{V+2*i}, v{V+2*i+1}")
    for i in range(4):
        A(f"v_add_f32 v{80+i}, v{80+i}, v{84+i}")
    A("v_add_f32 v80, v80, v82\nv_add_f32 v81, v81, v83\nv_add_f32 v80, v80, v81")
    A("v_mov_b32 v81, v80\ns_nop 1\nv_permlane32_swap_b32 v80, v81\ns_nop 1\nv_add_f32 v24, v80, v81")
    A("v_mul_f32 v82, 0xbd000000, v24")
    for i in range(16):
        A(f"v_add_f32 v{104+i}, v{V+i}, v82")
    A("v_mul_f32 v80, v104, v104\nv_mul_f32 v81, v105, v105")
    for i in range(2, 16):
        A(f"v_fmac_f32 v{80 + i % 2}, v{104+i}, v{104+i}")
    A("v_add_f32 v80, v80, v81")
    A("v_mov_b32 v81, v80\ns_nop 1\nv_permlane32_swap_b32 v80, v81\ns_nop 1\nv_add_f32 v25, v80, v81")
    if not OPT.get("gst"):
        ST.stamp("stats")
    A(f"""
    s_lshl_b32 s31, s27, 2
    s_lshl_b32 s32, s29, 1
    s_add_u32 s31, s31, s32
    s_lshl_b32 s31, s31, 6
    s_add_u32 s31, s31, s30
    s_lshl_b32 s31, s31, 10
    s_add_u32 s32, s31, {HIN_OFF:#x}
    s_add_u32 s33, s32, 0x10000
    s_add_u32 s34, s31, {HF_OFF:#x}
    s_add_u32 s35, s34, 0x10000
    s_lshl_b32 s36, s28, 9
    s_add_u32 s36, s36, {MISC + 64}
    v_lshlrev_b32 v29, 3, v0
    v_add_u32 v29, s36, v29
    v_mov_b32 v8, {MISC}
    """)

    def hin_store():
        for d in range(8):
            A(f"v_cvt_pk_bf16_f32 v{96+d}, v{V+2*d}, v{V+2*d+1}")
        A(f"""
        buffer_store_dwordx4 v[96:99], v2, s[56:59], s32 offen{SF}
        buffer_store_dwordx4 v[100:103], v2, s[56:59], s33 offen{SF}
        """)
    A(f"""
    s_lshl_b32 s36, s30, 12
    s_add_u32 s36, s36, {ST_OFF:#x}
    s_add_u32 s69, s36, {ST2_OFF - ST_OFF:#x}
    s_cmp_eq_u32 s29, 0
    s_cbranch_scc1 K1G_c0
    s_lshl_b32 s37, s27, 9
    s_add_u32 s38, s37, s69
    s_add_u32 s37, s37, s36
    s_barrier
    ds_read_b64 v[80:81], v29
    ds_read_b64 v[26:27], v8
    s_waitcnt lgkmcnt(0)
    v_sub_f32 v82, v24, v80
    v_add_f32 v24, v24, v80
    v_add_f32 v25, v25, v81
    v_mul_f32 v82, v82, v82
    v_fmac_f32 v25, 0x3c800000, v82
    s_mov_b32 exec_hi, 0
    buffer_store_dwordx4 v[24:27], v2, s[56:59], s37 offen
    buffer_store_dwordx4 v[24:27], v2, s[56:59], s38 offen sc1
    s_mov_b32 exec_hi, -1
    """)
    hin_store()
    A("s_branch K1G_c1")
    A.label("K1G_c0")
    A(f"""
    ds_write_b64 v29, v[24:25]
    s_waitcnt lgkmcnt(0)
    s_barrier
    ds_read_b64 v[26:27], v8
    s_mov_b32 s38, 0
    s_waitcnt lgkmcnt(0)
    """)
    A.label("K1G_poll")
    for i in range(4):
        A(f"buffer_load_dwordx4 {vr(104+4*i)}, v2, s[56:59], s36 offen offset:{i*1024} sc1")
    A("s_waitcnt vmcnt(0)")
    for i in range(4):
        A(f"v_xor_b32 v{120+2*i}, v{106+4*i}, v26\nv_xor_b32 v{121+2*i}, v{107+4*i}, v27")
    A(f"""
    v_or3_b32 v120, v120, v121, v122
    v_or3_b32 v123, v123, v124, v125
    v_or3_b32 v120, v120, v126, v127
    v_or_b32 v120, v120, v123
    v_cmp_ne_u32 vcc, 0, v120
    s_nop 3
    s_cmp_eq_u64 vcc, 0
    s_cbranch_scc1 K1G_got
    s_add_u32 s38, s38, 1
    s_cmp_gt_u32 s38, 0x40000
    s_cbranch_scc1 K1G_got
    s_cmp_lt_u32 s38, {OPT.get("fastpolls", 12)}
    s_cbranch_scc1 K1G_poll
    s_mov_b32 s36, s69
    s_sleep 1
    s_branch K1G_poll
    """)
    A.label("K1G_got")
    A("""
    v_add_f32 v80, v104, v108
    v_add_f32 v81, v112, v116
    v_add_f32 v80, v80, v81
    v_mov_b32 v81, v80
    s_nop 1
    v_permlane32_swap_b32 v80, v81
    s_nop 1
    v_add_f32 v80, v80, v81
    v_mul_f32 v80, 0x3b000000, v80
    v_add_f32 v82, v105, v109
    v_add_f32 v83, v113, v117
    v_add_f32 v82, v82, v83
    """)
    A("s_mov_b32 s68, 0x3c800000")
    for i in range(4):
        A(f"v_fma_f32 v{84+i}, v{104+4*i}, s68, -v80")
    A("v_mul_f32 v84, v84, v84")
    for i in range(1, 4):
        A(f"v_fmac_f32 v84, v{84+i}, v{84+i}")
    A("""
    v_fmac_f32 v82, 0x42800000, v84
    v_mov_b32 v83, v82
    s_nop 1
    v_permlane32_swap_b32 v82, v83
    s_nop 1
    v_add_f32 v82, v82, v83
    v_mov_b32 v83, 0x3727c5ac
    v_fmac_f32 v83, 0x3b000000, v82
    v_rsq_f32 v81, v83
    s_nop 0
    ds_write_b64 v29, v[80:81]
    """)
    hin_store()
    A("s_waitcnt lgkmcnt(0)")
    A.label("K1G_c1")
    A("s_barrier")
    ST.stamp("got")
    A("""
    ds_read_b64 v[80:81], v29
    s_waitcnt lgkmcnt(0)
    v_mul_f32 v82, v80, v81
    v_mul_f32 v83, 0xbfb8aa3b, v81
    v_mul_f32 v84, 0x3fb8aa3b, v82
    """)
    for i in range(16):
        A(f"v_fma_f32 v{104+i}, v{V+i}, v83, v84")
    for i in range(16):
        A(f"v_exp_f32 v{104+i}, v{104+i}")
    for i in range(16):
        A(f"v_fma_f32 v{V+i}, v{V+i}, v81, -v82")
    for i in range(16):
        A(f"v_add_f32 v{104+i}, 1.0, v{104+i}")
    for i in range(16):
        A(f"v_rcp_f32 v{104+i}, v{104+i}")
    A("s_nop 0")
    for i in range(16):
        A(f"v_mul_f32 v{V+i}, v{V+i}, v{104+i}")
    for d in range(8):
        A(f"v_cvt_pk_bf16_f32 v{120+d}, v{V+2*d}, v{V+2*d+1}")
    A(f"""
    buffer_store_dwordx4 v[120:123], v2, s[56:59], s34 offen{SF}
    buffer_store_dwordx4 v[124:127], v2, s[56:59], s35 offen{SF}
    """)
    if not OPT.get("gst"):
        ST.stamp("stored")
    ST.flush(56, 3, 64)
    A("s_endpgm")

    A.label("K1_F")
    if OPT.get("noF"):
        A("s_endpgm")
    D = 4
    RST, TST = 24576, 16384
    TB = D * RST
    A(f"""
    s_sub_u32 s27, s25, 16
    s_mul_i32 s26, s24, 3
    s_lshr_b32 s31, s27, 2
    s_add_u32 s26, s26, s31
    s_and_b32 s27, s27, 3
    s_and_b32 s28, s3, 1
    s_lshr_b32 s29, s3, 1
    s_mul_i32 s30, s26, 192
    s_mul_i32 s31, s3, 24
    s_add_u32 s40, s30, s31
    s_lshl_b32 s40, s40, 10
    s_mul_i32 s41, s3, 3072
    s_lshl_b32 s31, s28, 6
    v_xor_b32 v3, s31, v3
    v_xor_b32 v4, 64, v3
    v_xor_b32 v19, v14, v12
    v_lshlrev_b32 v6, 10, v12
    v_lshl_add_u32 v6, v19, 6, v6
    v_lshl_add_u32 v6, v15, 4, v6
    s_lshl_b32 s44, s3, 13
    s_lshl_b32 s31, s27, 8
    s_add_u32 s44, s44, s31
    s_lshl_b32 s45, s3, 11
    s_add_u32 s45, s45, {TB}
    s_waitcnt lgkmcnt(0)
    """)
    srd(A, 48, 10, 11, 0x80000)
    srd(A, 52, 12, 13, 4718592)
    q = VmQ(A)

    A("""
    s_sub_u32 s46, s25, 16
    s_lshr_b32 s46, s46, 2
    s_mul_i32 s46, s46, 3
    s_lshl_b32 s31, s27, 1
    s_add_u32 s46, s46, s31
    """ if OPT.get("rotF", 1) == 1 else ("s_mov_b32 s46, 0" if OPT.get("rotF") == 0 else "s_and_b32 s46, s27, 1\ns_lshl_b32 s46, s46, 2"))

    def f_dma_list(c):
        st = c % D
        L = []
        for i in range(2):
            pre = f"""
            s_add_u32 s42, s46, {c}
            s_and_b32 s42, s42, 7
            s_lshl_b32 s43, s42, 16
            s_lshl_b32 s42, s42, 7
            s_add_u32 s43, s43, s44
            s_add_u32 s42, s42, s40
            """ if i == 0 else ""
            L.append((pre + f"s_add_u32 m0, s45, {st*TST + i*1024}\ns_add_u32 s31, s43, {i*4096}",
                      f"buffer_load_dwordx4 v6, s[48:51], s31 offen{TFL} lds", ("T", c, i)))
        for g in range(3):
            L.append((f"s_add_u32 m0, s41, {st*RST + g*1024}\ns_add_u32 s31, s42, {g*8192}",
                      f"buffer_load_dwordx4 v{3 + g % 2}, s[52:55], s31 offen{nt} lds", ("R", c, g)))
        return L

    def emit(e):
        A(e[0])
        q.issue(e[1], e[2])
    for e in f_dma_list(0):
        emit(e)
    srd(A, 56, 18, 19, WS_SIZE)
    A("""
    v_and_b32 v20, 0x13, v18
    v_bfe_u32 v21, v18, 2, 1
    v_lshl_add_u32 v20, v21, 3, v20
    v_bfe_u32 v21, v18, 3, 1
    v_lshl_add_u32 v20, v21, 2, v20
    v_bfe_u32 v21, v20, 1, 3
    v_xor_b32 v21, v21, v17
    v_lshlrev_b32 v22, 7, v20
    v_lshl_add_u32 v22, v21, 4, v22
    s_mul_i32 s31, s28, 12288
    v_add_u32 v24, s31, v22
    v_xor_b32 v25, 32, v24
    v_xor_b32 v26, 64, v24
    v_xor_b32 v27, 0x60, v24
    v_add_u32 v28, 0xc000, v24
    v_add_u32 v29, 0xc000, v25
    v_add_u32 v30, 0xc000, v26
    v_add_u32 v31, 0xc000, v27
    """)
    A(f"""
    v_lshl_add_u32 v23, v17, 3, v14
    v_lshlrev_b32 v23, 8, v23
    v_lshl_add_u32 v23, v16, 5, v23
    v_lshl_add_u32 v23, v15, 3, v23
    v_xor_b32 v21, s29, v14
    v_lshl_add_u32 v9, v21, 6, v23
    v_add_u32 v9, {TB}, v9
    """)
    for e in f_dma_list(1):
        emit(e)
    if OPT.get("touch", 0):
        A(f"""
        v_lshlrev_b32 v5, 10, v0
        s_cmp_ge_u32 s3, 2
        s_cbranch_scc1 K1F_t1
        s_lshr_b32 s31, s27, 1
        s_mul_i32 s31, s31, 96
        s_lshl_b32 s33, s3, 5
        s_add_u32 s31, s31, s33
        s_add_u32 s31, s31, s30
        s_lshl_b32 s31, s31, 10
        s_and_b32 s33, s27, 1
        s_lshl_b32 s33, s33, 7
        s_add_u32 s31, s31, s33
        buffer_load_dword v1, v5, s[52:55], s31 offen offset:256{nt}
        """)
        A.label("K1F_t1")
    AC = 32
    FB = [80, 96]
    for i in range(48):
        A(f"v_mov_b32 v{AC+i}, 0")
    ST = ST0.fork()
    ST.stamp("issued")

    def f_reads(kk):
        c, s_ = kk // 4, kk % 4
        st = c % D
        b = FB[kk % 2]
        a = 24 + s_ + (4 if st >= 2 else 0)
        for j in range(2):
            A(f"ds_read_b64_tr_b16 {vr(b+12+2*j, 2)}, v9 offset:{st*TST + s_*4096 + j*1024}")
        for rt in range(3):
            A(f"ds_read_b128 {vr(b+4*rt)}, v{a} offset:{(st % 2)*RST + rt*4096}")
    q.need(("R", 0, 2))
    A("s_barrier")
    ST.stamp("bar0")
    f_reads(0)
    if OPT.get("touch", 0):
        A(f"""
        s_cmp_ge_u32 s3, 3
        s_cbranch_scc1 K1F_t2
        s_lshl_b32 s31, s3, 6
        s_add_u32 s31, s31, s30
        s_lshl_b32 s31, s31, 10
        s_lshl_b32 s33, s27, 7
        s_add_u32 s31, s31, s33
        buffer_load_dword v1, v5, s[52:55], s31 offen offset:512{nt}
        """)
        A.label("K1F_t2")
    pend = f_dma_list(2) + f_dma_list(3)
    for kk in range(32):
        c, s_ = kk // 4, kk % 4
        b = FB[kk % 2]
        if s_ == 3 and c < 7:
            A("s_waitcnt lgkmcnt(0)")
            q.need(("R", c + 1, 2))
            A("s_barrier")
            if c in (0, 1, 3, 5):
                ST.stamp("bar%d" % (c + 1))
            f_reads(kk + 1)
            if c + D < 8:
                pend += f_dma_list(c + D)
        elif kk < 31:
            f_reads(kk + 1)
            A("s_waitcnt lgkmcnt(5)")
        else:
            A("s_waitcnt lgkmcnt(0)")
        for rt in range(3):
            A(f"v_mfma_f32_32x32x16_bf16 {vr(AC+16*rt,16)}, {vr(b+4*rt)}, {vr(b+12)}, {vr(AC+16*rt,16)}")
            if pend and (rt < 2 or len(pend) > 5):
                emit(pend.pop(0))
    assert not pend
    ST.stamp("loop_end")
    A(f"""
    s_mul_i32 s31, s28, 96
    s_add_u32 s30, s30, s31
    s_lshl_b32 s33, s27, 2
    s_add_u32 s33, s33, s29
    s_lshl_b32 s33, s33, 5
    """)
    for rt in range(3):
        A(f"""
        s_add_u32 s34, s30, {32*rt}
        s_lshr_b32 s31, s34, 9
        s_bfe_u32 s32, s34, 0x50004
        s_add_u32 s32, s32, s33
        s_mul_i32 s32, s32, 10
        s_add_u32 s32, s32, s31
        s_lshl_b32 s32, s32, 10
        s_add_u32 s{36+2*rt}, s32, {WF_OFF:#x}
        s_add_u32 s{37+2*rt}, s32, {WF_OFF + 10240:#x}
        """)
    for rt in range(3):
        for hf in range(2):
            o = 80 + 8 * rt + 4 * hf
            for d in range(4):
                A(f"v_cvt_pk_bf16_f32 v{o+d}, v{AC+16*rt+8*hf+2*d}, v{AC+16*rt+8*hf+2*d+1}")
            A(f"buffer_store_dwordx4 {vr(o)}, v2, s[56:59], s{36+2*rt+hf} offen{SF}")
    ST.flush(56, 3, 112)
    A("s_endpgm")

    A.label("K1_Z")
    A(f"""
    s_lshl_b32 s26, s24, 2
    s_add_u32 s26, s26, s25
    s_sub_u32 s26, s26, 28
    s_lshl_b32 s27, s3, 1
    s_and_b32 s28, s27, 3
    s_lshl_b32 s28, s28, 6
    v_xor_b32 v3, s28, v2
    v_xor_b32 v4, 64, v3
    s_lshl_b32 s29, s26, 4
    s_add_u32 s29, s29, s27
    s_lshl_b32 s29, s29, 10
    s_lshl_b32 s30, s3, 11
    v_lshl_add_u32 v23, v17, 3, v14
    v_lshlrev_b32 v23, 10, v23
    v_lshl_add_u32 v23, v16, 5, v23
    v_lshl_add_u32 v23, v15, 3, v23
    v_xor_b32 v21, s27, v14
    v_lshl_add_u32 v9, v21, 6, v23
    v_xor_b32 v8, 64, v9
    s_waitcnt lgkmcnt(0)
    """)
    srd(A, 48, 10, 11, 0x80000)
    srd(A, 56, 18, 19, WS_SIZE)
    A(f"""
    s_mov_b32 m0, s30
    s_add_u32 s31, s29, 1024
    buffer_load_dwordx4 v3, s[48:51], s29 offen lds
    s_add_u32 m0, s30, 1024
    s_lshl_b32 s32, s27, 5
    buffer_load_dwordx4 v4, s[48:51], s31 offen lds
    s_add_u32 s32, s32, s26
    s_mul_i32 s32, s32, 10240
    s_add_u32 s32, s32, {WF_OFF + 9*1024:#x}
    s_add_u32 s33, s32, 327680
    s_waitcnt vmcnt(0)
    s_barrier
    ds_read_b64_tr_b16 v[32:33], v9
    ds_read_b64_tr_b16 v[34:35], v9 offset:4096
    ds_read_b64_tr_b16 v[36:37], v8
    ds_read_b64_tr_b16 v[38:39], v8 offset:4096
    s_waitcnt lgkmcnt(2)
    buffer_store_dwordx4 v[32:35], v2, s[56:59], s32 offen{SF}
    s_waitcnt lgkmcnt(0)
    buffer_store_dwordx4 v[36:39], v2, s[56:59], s33 offen{SF}
    """)
    A.label("K1_end")
    A("s_endpgm")


def kd(A, name, vgpr, accum, sgpr=102):
    A.raw(f""".p2align 6
.amdhsa_kernel {name}
  .amdhsa_next_free_vgpr {vgpr}
  .amdhsa_next_free_sgpr {sgpr}
  .amdhsa_accum_offset {accum}
  .amdhsa_group_segment_fixed_size 0
  .amdhsa_kernarg_size 72
  .amdhsa_user_sgpr_count 2
  .amdhsa_user_sgpr_kernarg_segment_ptr 1
  .amdhsa_system_sgpr_workgroup_id_x 1
.end_amdhsa_kernel""")


def main():
    for a in sys.argv[1:]:
        k, v = a.split("=")
        OPT[k] = eval(v)
    A = Asm()
    A.raw("; @launch kernel=k1_kernel grid=(256,1,1) block=(512,1,1) lds=163840")
    for _ in range(OPT.get("k2rep", 1)):
        A.raw("; @launch kernel=k2_kernel grid=(256,1,1) block=(%d,1,1) lds=65536" % (320 if OPT.get("hw", 0) else 256))
    A.raw('.amdgcn_target "amdgcn-amd-amdhsa--gfx950"')
    A.raw(".text")
    gen_k1(A)
    gen_k2(A)
    A.raw('.section .rodata,"a"')
    kd(A, "k1_kernel", 136, 136)
    kd(A, "k2_kernel", 256, 256)
    sys.stdout.write(A.text())


if __name__ == "__main__":
    main()
```

```python
import sys

HF_OFF = 0x1000
HIN_OFF = 0x300000
WF_OFF = 0x600000
ST_OFF = 0xC00000
ST2_OFF = 0xD00000
WS_SIZE = 0x1000000
OOB = 0x40000000

OPT = dict(nt_in=False, stamps=False)


class Asm:
    def __init__(self):
        self.L = []

    def __call__(self, s):
        for line in s.strip("\n").split("\n"):
            self.L.append("  " + line.strip())

    def label(self, l):
        self.L.append(l + ":")

    def raw(self, s):
        self.L.append(s)

    def text(self):
        return "\n".join(self.L) + "\n"


def vr(b, n=4):
    if b >= 256:
        b -= 256
        return "a[%d:%d]" % (b, b + n - 1) if n > 1 else "a%d" % b
    return "v[%d:%d]" % (b, b + n - 1) if n > 1 else "v%d" % b


def srd(A, d, lo, hi, size):
    A(f"s_mov_b32 s{d}, s{lo}\ns_mov_b32 s{d+1}, s{hi}\ns_mov_b32 s{d+2}, {size:#x}\ns_mov_b32 s{d+3}, 0x20000")


DBG_OFF = 0xE00000


class Stamps:
    SB = 72

    def __init__(self, A, kern):
        self.A = A
        self.kern = kern
        self.n = 0
        self.names = []

    def start(self):
        if OPT["stamps"]:
            self.A("s_memrealtime s[100:101]")
            self.stamp("start")

    def stamp(self, name):
        if OPT["stamps"]:
            assert self.n < 13
            self.A(f"s_memtime s[{self.SB+2*self.n}:{self.SB+2*self.n+1}]")
            self.n += 1
            self.names.append(name)

    def fork(self):
        o = Stamps(self.A, self.kern)
        o.n = self.n
        o.names = list(self.names)
        return o

    def flush(self, srdreg, wave_sgpr, tmpv):
        if not OPT["stamps"]:
            return
        A = self.A
        A("s_waitcnt vmcnt(0)")
        self.stamp("end")
        A("s_mov_b32 s99, s100")
        A("s_memrealtime s[100:101]")
        A("s_waitcnt lgkmcnt(0)")
        A(f"v_mov_b32 v{tmpv}, s99")
        A(f"v_mov_b32 v{tmpv+15}, s100")
        for i in range(1, 15):
            if i < self.n:
                A(f"s_sub_u32 s{self.SB+2*i}, s{self.SB+2*i}, s{self.SB}\nv_mov_b32 v{tmpv+i}, s{self.SB+2*i}")
            else:
                A(f"v_mov_b32 v{tmpv+i}, 0")
        A(f"""
        s_lshl_b32 s{self.SB}, s2, 3
        s_add_u32 s{self.SB}, s{self.SB}, s{wave_sgpr}
        s_lshl_b32 s{self.SB}, s{self.SB}, 6
        s_add_u32 s{self.SB}, s{self.SB}, {DBG_OFF + self.kern*256*8*64:#x}
        v_mov_b32 v{tmpv+16}, 0
        s_mov_b64 exec, 1
        """)
        for j in range(4):
            A(f"buffer_store_dwordx4 v[{tmpv+4*j}:{tmpv+4*j+3}], v{tmpv+16}, s[{srdreg}:{srdreg+3}], s{self.SB} offen offset:{16*j}")
        sys.stderr.write("stamps k%d: %s\n" % (self.kern, self.names))


class VmQ:
    def __init__(self, A):
        self.A = A
        self.n = 0
        self.done = 0
        self.tag = {}

    def issue(self, text, tag=None):
        self.A(text)
        self.n += 1
        if tag is not None:
            self.tag[tag] = self.n
        assert self.n - self.done <= 63, "vmcnt overflow"

    def need(self, *tags):
        idx = max(self.tag[t] for t in tags)
        if idx > self.done:
            self.A("s_waitcnt vmcnt(%d)" % (self.n - idx))
            self.done = idx
            return True
        return False

    def outstanding(self):
        return self.n - self.done


def gen_k2(A):
    NS = 2
    PF = 3
    ACC = 16
    STG = [96, 176]
    A.raw(".globl k2_kernel\n.p2align 8\n.type k2_kernel,@function")
    A.label("k2_kernel")
    A("""
    s_cmp_ge_u32 s2, 256
    s_cbranch_scc1 K2_end
    s_load_dwordx2 s[4:5], s[0:1], 64
    s_load_dwordx2 s[6:7], s[0:1], 0
    s_load_dwordx2 s[20:21], s[0:1], 48
    """)
    ST = Stamps(A, 1)
    ST.start()
    A("""
    v_lshrrev_b32 v1, 6, v0
    v_and_b32 v0, 63, v0
    s_and_b32 s24, s2, 7
    v_readfirstlane_b32 s3, v1
    s_lshr_b32 s25, s2, 3
    s_and_b32 s26, s24, 1
    s_lshr_b32 s27, s24, 1
    s_and_b32 s28, s25, 7
    s_lshr_b32 s29, s25, 3
    s_lshl_b32 s27, s27, 2
    s_add_u32 s27, s27, s29
    s_lshl_b32 s26, s26, 5
    s_lshl_b32 s29, s28, 2
    s_add_u32 s26, s26, s29
    """)
    A(f"""
    v_lshlrev_b32 v2, 4, v0
    v_add_u32 v3, 0x1000, v2
    v_add_u32 v4, 0x2000, v2
    v_add_u32 v5, 0x400, v2
    v_add_u32 v7, 0x1400, v2
    s_cmp_eq_u32 s28, 0
    s_cselect_b32 s30, {OOB:#x}, 0
    s_cmp_eq_u32 s28, 7
    s_cselect_b32 s31, {OOB:#x}, 0
    v_add_u32 v6, s30, v2
    v_add_u32 v7, s31, v7
    s_lshl_b32 s32, s3, 9
    s_add_u32 s32, s32, s26
    s_lshl_b32 s32, s32, 10
    s_add_u32 s33, s32, {HIN_OFF:#x}
    s_add_u32 s32, s32, {HF_OFF - 1024:#x}
    s_lshl_b32 s34, s27, 5
    s_lshl_b32 s35, s3, 3
    s_add_u32 s34, s34, s35
    s_mul_i32 s34, s34, 10240
    s_add_u32 s34, s34, {WF_OFF:#x}
    """)
    A("""
    v_lshrrev_b32 v1, 2, v0
    v_lshlrev_b32 v1, 10, v1
    v_and_b32 v8, 3, v0
    v_lshlrev_b32 v8, 4, v8
    v_add_u32 v1, v1, v8
    s_add_u32 s36, s26, s3
    s_lshl_b32 s36, s36, 15
    s_lshl_b32 s37, s27, 6
    s_add_u32 s36, s36, s37
    s_add_u32 s37, s36, 0x4000
    s_waitcnt lgkmcnt(0)
    """)
    srd(A, 8, 4, 5, WS_SIZE)
    srd(A, 12, 6, 7, 0x200000)
    srd(A, 16, 20, 21, 0x200000)
    q = VmQ(A)
    names = ["A0", "B0", "A1", "B3", "A2", "B6", "A3", "A4", "A5", "B1", "B4", "B7", "B9", "Z0", "Z1", "Z2", "Z3", "B2", "B5", "B8"]
    roff = {n: 4 * i for i, n in enumerate(names)}

    def load_text(s, n):
        r = vr(STG[s % NS] + roff[n])
        k = int(n[1])
        if n[0] == "A":
            if k == 0:
                return f"buffer_load_dwordx4 {r}, v6, s[8:11], s32 offen"
            if k == 5:
                return f"buffer_load_dwordx4 {r}, v7, s[8:11], s32 offen"
            return f"buffer_load_dwordx4 {r}, v5, s[8:11], s32 offen offset:{(k-1)*1024}"
        if n[0] == "Z":
            return f"buffer_load_dwordx4 {r}, v2, s[8:11], s33 offen offset:{k*1024}"
        return f"buffer_load_dwordx4 {r}, v{2 + k // 4}, s[8:11], s34 offen offset:{(k % 4)*1024}"

    def adv():
        A("s_add_u32 s32, s32, 0x10000\ns_add_u32 s33, s33, 0x10000\ns_add_u32 s34, s34, 10240")

    TD = 0
    HW = OPT.get("hw", 0)
    if HW:
        A(f"""
        s_cmp_lg_u32 s3, 4
        s_cbranch_scc1 K2_main
        s_sub_u32 s32, s32, {4*8*65536}
        s_sub_u32 s33, s33, {4*8*65536}
        s_sub_u32 s34, s34, {4*8*10240}
        s_mul_i32 s38, s28, 1280
        s_add_u32 s38, s38, s34
        s_lshr_b32 s39, s25, 3
        s_lshl_b32 s39, s39, 10
        s_add_u32 s40, s39, s32
        s_add_u32 s40, s40, 1024
        s_add_u32 s41, s39, s33
        v_and_b32 v20, 31, v0
        v_lshlrev_b32 v21, 7, v20
        v_add_u32 v21, s38, v21
        v_mov_b32 v22, 10240
        v_and_b32 v23, 7, v0
        v_lshlrev_b32 v23, 7, v23
        v_add_u32 v24, s40, v23
        v_add_u32 v23, s41, v23
        v_cmp_gt_u32 vcc, 24, v20
        s_nop 1
        v_cndmask_b32 v23, v23, v24, vcc
        v_mov_b32 v24, 0x10000
        v_cmp_gt_u32 vcc, 16, v20
        s_nop 1
        v_cndmask_b32 v16, v23, v21, vcc
        v_cndmask_b32 v17, v24, v22, vcc
        v_lshrrev_b32 v20, 5, v0
        v_lshlrev_b32 v18, 3, v17
        v_mul_u32_u24 v20, v20, v18
        v_add_u32 v16, v16, v20
        v_lshl_add_u32 v19, v18, 1, v16
        s_mov_b32 exec_lo, 0xffff03ff
        s_mov_b32 exec_hi, 0xffff03ff
        """)
        hs = OPT.get("hstart", 1)
        for _ in range(hs - 1):
            A("v_add_u32 v16, v16, v17\nv_add_u32 v19, v19, v17")
        for st in range(hs, 8):
            A("v_add_u32 v16, v16, v17\nv_add_u32 v19, v19, v17")
            A("buffer_load_dword v20, v16, s[8:11], 0 offen\nbuffer_load_dword v21, v19, s[8:11], 0 offen")
            A(f"s_waitcnt vmcnt({OPT.get('hdepth', 2)})")
        A("s_endpgm")
        A.label("K2_main")
    PFL = OPT.get("pfl", 20)
    allloads = [(s_, n) for s_ in range(8) for n in names]
    nxt = [0]

    def issue_next():
        t = allloads[nxt[0]]
        q.issue(load_text(*t), t)
        nxt[0] += 1
        if nxt[0] % 20 == 0 and nxt[0] < 160:
            adv()
    nt = " nt" if OPT["nt_in"] else ""
    for i in range(PFL):
        issue_next()
        if i < 20:
            for j in range(4):
                A(f"v_mov_b32 v{ACC + 4*i + j}, 0")
    for i in range(4 * min(PFL, 20), 80):
        A(f"v_mov_b32 v{ACC + i}, 0")
    A("s_nop 1")
    ST.stamp("issued")
    xf_done = False
    for s in range(8):
        if s in (1, 2, 4, 6):
            ST.stamp("stage%d" % s)
        base = STG[s % NS]
        seq = []
        for dj in range(3):
            for r in range(4):
                for di in range(3):
                    seq.append((r, dj, "A%d" % (r + di), "B%d" % (di * 3 + dj)))
                if dj == 1:
                    seq.append((r, dj, "Z%d" % r, "B9"))
        for mi, (r, dj, an, bn) in enumerate(seq):
            if TD and mi == 1 and s + TD < 8:
                touch()
            q.need((s, an), (s, bn))
            d = ACC + 20 * r + (4 - 2 * dj)
            if OPT.get("m16"):
                dd = ACC + 20 * r + 8 * (mi % 2)
                A(f"v_mfma_f32_16x16x32_bf16 {vr(dd,4)}, {vr(base+roff[an])}, {vr(base+roff[bn])}, {vr(dd,4)}")
                A(f"v_mfma_f32_16x16x32_bf16 {vr(dd+4,4)}, {vr(base+roff[bn])}, {vr(base+roff[an])}, {vr(dd+4,4)}")
            elif not OPT.get("nomfma"):
                A(f"v_mfma_f32_32x32x16_bf16 {vr(d,16)}, {vr(base+roff[an])}, {vr(base+roff[bn])}, {vr(d,16)}")
            tgt = min(160, PFL + s * 20 + (mi + 1) // 2)
            k = 0
            while nxt[0] < tgt:
                assert allloads[nxt[0]][0] < s + NS, "register ring overrun"
                issue_next()
                k += 1
            if nxt[0] == 160 and not xf_done:
                q.issue(f"buffer_load_dwordx4 v[8:11], v1, s[12:15], s36 offen{nt}", "xf0")
                q.issue(f"buffer_load_dwordx4 v[12:15], v1, s[12:15], s37 offen{nt}", "xf1")
                xf_done = True
                k += 1
            if k == 0:
                A("s_nop 0")
    A("s_nop 15")
    ST.stamp("loop_end")
    for r in range(4):
        E = ACC + 20 * r
        A(f"v_add_f32 v{E+3}, v{E+3}, v{E+18}\nv_add_f32 v{E+16}, v{E+16}, v{E+1}")
        A(f"v_permlane32_swap_b32 v{E+0}, v{E+19}")
    A("s_mov_b32 exec_hi, 0")
    for r in range(4):
        E = ACC + 20 * r
        A(f"v_add_f32 v{E+17}, v{E+17}, v{E+19}")
    A("s_mov_b32 exec_hi, -1\ns_mov_b32 exec_lo, 0")
    for r in range(4):
        E = ACC + 20 * r
        A(f"v_add_f32 v{E+2}, v{E+2}, v{E+0}")
    A("s_mov_b32 exec_lo, -1")
    A("s_lshl_b32 s38, s3, 12\nv_add_u32 v96, s38, v2")
    for r in range(4):
        E = ACC + 20 * r
        for j in range(4):
            A(f"ds_write_b128 v96, v[{E+2+4*j}:{E+5+4*j}] offset:{r*16384 + j*1024}")
    A("s_lshl_b32 s38, s3, 14\nv_add_u32 v97, s38, v2")
    A("s_waitcnt lgkmcnt(0)\ns_barrier")
    ST.stamp("bar")
    for w in range(4):
        for j in range(4):
            A(f"ds_read_b128 v[{100+16*w+4*j}:{103+16*w+4*j}], v97 offset:{w*4096 + j*1024}")
    A("""
    v_and_b32 v98, 31, v0
    v_lshlrev_b32 v98, 2, v98
    v_lshrrev_b32 v99, 5, v0
    v_lshlrev_b32 v99, 11, v99
    v_add3_u32 v98, v98, v99, s38
    v_lshrrev_b32 v99, 2, v0
    v_lshlrev_b32 v99, 7, v99
    v_and_b32 v164, 3, v0
    v_lshlrev_b32 v164, 5, v164
    v_add3_u32 v99, v99, v164, s38
    s_waitcnt lgkmcnt(8)
    """)
    for i in range(16):
        A(f"v_add_f32 v{100+i}, v{100+i}, v{116+i}")
    A("s_waitcnt lgkmcnt(0)")
    for i in range(16):
        A(f"v_add_f32 v{132+i}, v{132+i}, v{148+i}")
    for i in range(16):
        A(f"v_add_f32 v{100+i}, v{100+i}, v{132+i}")
    for i in range(16):
        p, qq = i % 2, i // 2
        A(f"ds_write_b32 v98, v{100+i} offset:{(8*p + qq)*128}")
    for it in range(2):
        A(f"ds_read_b128 v[{116+8*it}:{119+8*it}], v99 offset:{it*2048}")
        A(f"ds_read_b128 v[{120+8*it}:{123+8*it}], v99 offset:{it*2048+16}")
    q.need("xf0", "xf1")
    for it in range(2):
        for d in range(4):
            x = 8 + 4 * it + d
            A(f"v_lshlrev_b32 v{132+8*it+2*d}, 16, v{x}\nv_and_b32 v{133+8*it+2*d}, 0xffff0000, v{x}")
    A("s_waitcnt lgkmcnt(0)")
    for i in range(16):
        A(f"v_add_f32 v{116+i}, v{116+i}, v{132+i}")
    for it in range(2):
        for d in range(4):
            A(f"v_cvt_pk_bf16_f32 v{148+4*it+d}, v{116+8*it+2*d}, v{117+8*it+2*d}")
    A("buffer_store_dwordx4 v[148:151], v1, s[16:19], s36 offen")
    A("buffer_store_dwordx4 v[152:155], v1, s[16:19], s37 offen")
    ST.flush(8, 3, 100)
    if OPT.get("dbgout"):
        A(f"""
        s_cmp_lg_u32 s2, 0
        s_cbranch_scc1 K2_end
        s_cmp_lg_u32 s3, 0
        s_cbranch_scc1 K2_end
        s_load_dwordx2 s[40:41], s[0:1], 56
        v_mov_b32 v130, 0
        s_mov_b32 s44, {DBG_OFF:#x}
        s_mov_b32 s45, {DBG_OFF + 128*8*64:#x}
        buffer_load_dword v120, v130, s[8:11], s44 offen
        buffer_load_dword v121, v130, s[8:11], s44 offen offset:60
        buffer_load_dword v122, v130, s[8:11], s45 offen
        buffer_load_dword v123, v130, s[8:11], s45 offen offset:60
        buffer_load_dword v124, v130, s[8:11], s44 offen offset:32
        buffer_load_dword v125, v130, s[8:11], s45 offen offset:32
        buffer_load_dword v126, v130, s[8:11], s44 offen offset:8
        buffer_load_dword v127, v130, s[8:11], s45 offen offset:8
        s_waitcnt vmcnt(0) lgkmcnt(0)
        """)
        srd(A, 52, 40, 41, 256)
        A("""
        v_sub_u32 v121, v121, v120
        v_sub_u32 v122, v122, v120
        v_sub_u32 v123, v123, v120
        v_sub_u32 v128, v100, v120
        v_sub_u32 v129, v115, v120
        v_mov_b32 v120, v108
        v_mov_b32 v131, v101
        s_nop 1
        buffer_store_dwordx4 v[120:123], v130, s[52:55], 0 offen
        buffer_store_dwordx4 v[124:127], v130, s[52:55], 0 offen offset:16
        buffer_store_dwordx4 v[128:131], v130, s[52:55], 0 offen offset:32
        """)
    A.label("K2_end")
    A("s_endpgm")


def gen_k1(A):
    nt = " nt" if OPT["nt_in"] else ""
    SF = OPT.get("sf", " sc1")
    A.raw(".globl k1_kernel\n.p2align 8\n.type k1_kernel,@function")
    A.label("k1_kernel")
    A("""
    s_cmp_ge_u32 s2, 256
    s_cbranch_scc1 K1_end
    s_load_dwordx4 s[4:7], s[0:1], 8
    s_load_dwordx4 s[8:11], s[0:1], 24
    s_load_dwordx2 s[12:13], s[0:1], 40
    s_load_dwordx4 s[16:19], s[0:1], 56
    """)
    ST0 = Stamps(A, 0)
    ST0.start()
    A("""
    v_lshrrev_b32 v1, 6, v0
    v_and_b32 v0, 63, v0
    s_and_b32 s24, s2, 7
    v_readfirstlane_b32 s3, v1
    s_lshr_b32 s25, s2, 3
    """)
    A("""
    v_lshlrev_b32 v2, 4, v0
    v_lshrrev_b32 v10, 3, v0
    v_and_b32 v11, 7, v0
    v_lshrrev_b32 v12, 4, v0
    v_xor_b32 v13, v11, v12
    v_lshlrev_b32 v3, 10, v10
    v_lshl_add_u32 v3, v13, 4, v3
    v_xor_b32 v4, 64, v3
    v_bfe_u32 v14, v0, 2, 2
    v_and_b32 v15, 3, v0
    v_and_b32 v16, 1, v12
    v_lshrrev_b32 v17, 5, v0
    v_and_b32 v18, 31, v0
    s_cmp_ge_u32 s25, 16
    s_cbranch_scc1 K1_FZ
    """)

    def loader_loop(q, D, dma_list, last_tag, extra_after=None, pre_barrier=None, npro=None):
        nxt = [0]

        def issue_to(lim):
            while nxt[0] <= lim and nxt[0] < 8:
                c = nxt[0]
                for e in dma_list(c):
                    A(e[0])
                    q.issue(e[1], e[2])
                if extra_after and c in extra_after:
                    extra_after[c]()
                nxt[0] += 1
        issue_to((D - 2 if npro is None else npro) - 1)
        for n in range(8):
            q.need(last_tag(n))
            if pre_barrier and n in pre_barrier:
                pre_barrier[n]()
            A("s_barrier")
            issue_to(n - 2 + D)

    def kstep_loop(reads, mfmas, nrd, ST, stamp_at, fill=None):
        def bar(kk):
            if kk % 4 == 0:
                A("s_barrier")
                if kk // 4 in stamp_at:
                    ST.stamp("bar%d" % (kk // 4))
        for kk in (0, 1):
            bar(kk)
            for r in reads(kk):
                A(r)
        for kk in range(32):
            A(f"s_waitcnt lgkmcnt({nrd if kk + 1 < 32 else 0})")
            rl = reads(kk + 2) if kk + 2 < 32 else []
            ml = mfmas(kk)
            per = -(-len(rl) // len(ml)) if rl else 0
            for i, m in enumerate(ml):
                A(m)
                if i == 0 and rl:
                    bar(kk + 2)
                for r in rl[i * per:(i + 1) * per]:
                    A(r)
            if fill and kk in fill:
                fill[kk]()

    D = 5
    RST, TST = 16384, 8192
    TB = D * RST
    XB = TB + D * TST
    MISC = XB + 16384
    A("""
    s_lshl_b32 s26, s24, 1
    s_lshr_b32 s27, s25, 3
    s_add_u32 s26, s26, s27
    s_and_b32 s27, s25, 7
    s_cmp_lt_u32 s3, 4
    s_cbranch_scc1 K1G_comp
    """)
    A(f"""
    s_sub_u32 s28, s3, 4
    s_lshl_b32 s40, s26, 17
    s_lshl_b32 s31, s28, 16
    s_add_u32 s40, s40, s31
    s_lshl_b32 s41, s28, 13
    v_lshrrev_b32 v19, 2, v11
    v_xor_b32 v19, v19, v16
    v_lshlrev_b32 v6, 10, v10
    v_lshl_add_u32 v6, v19, 6, v6
    v_lshl_add_u32 v6, v15, 4, v6
    s_lshl_b32 s44, s28, 15
    s_lshl_b32 s31, s27, 7
    s_add_u32 s44, s44, s31
    s_add_u32 s47, s40, s31
    s_lshl_b32 s45, s28, 12
    s_add_u32 s45, s45, {TB}
    s_and_b32 s46, s26, 1
    s_lshl_b32 s46, s46, 2
    s_add_u32 s46, s46, s27
    s_waitcnt lgkmcnt(0)
    """)
    srd(A, 48, 8, 9, 0x80000)
    srd(A, 52, 6, 7, 0x200000)
    q = VmQ(A)

    def g_dma_list(c):
        st = c % D
        L = []
        for i in range(4):
            pre = f"""
            s_add_u32 s42, s46, {c}
            s_and_b32 s42, s42, 7
            s_lshl_b32 s43, s42, 16
            s_lshl_b32 s42, s42, 7
            s_add_u32 s43, s43, s44
            s_add_u32 s42, s42, s40
            """ if i == 0 else ""
            L.append((pre + f"s_add_u32 m0, s45, {st*TST + i*1024}\ns_add_u32 s31, s43, {i*8192}",
                      "buffer_load_dwordx4 v6, s[48:51], s31 offen lds", ("T", c, i)))
            for g in (2 * i, 2 * i + 1):
                L.append((f"s_add_u32 m0, s41, {st*RST + g*1024}\ns_add_u32 s31, s42, {g*8192}",
                          f"buffer_load_dwordx4 v{3 + g % 2}, s[52:55], s31 offen{nt} lds", ("R", c, g)))
        return L

    def g_after0():
        srd(A, 56, 18, 19, WS_SIZE)
        srd(A, 60, 4, 5, 0x200000)
        A(f"""
        s_lshl_b32 s36, s26, 2
        s_lshl_b32 s31, s28, 1
        s_add_u32 s36, s36, s31
        s_lshl_b32 s36, s36, 12
        s_add_u32 s69, s36, {ST2_OFF:#x}
        s_add_u32 s36, s36, {ST_OFF:#x}
        v_lshlrev_b32 v5, 7, v0
        """)

    def g_after6():
        for g in range(8):
            A(f"s_add_u32 m0, s41, {XB + g*1024}\ns_add_u32 s31, s47, {g*8192}")
            q.issue(f"buffer_load_dwordx4 v{3 + g % 2}, s[60:63], s31 offen{nt} lds", ("X", g))

    loader_loop(q, D, g_dma_list, lambda n: ("R", n, 7), {0: g_after0, 6: g_after6}, None, OPT.get("gpro", 2))
    A(f"s_mov_b32 s38, 0\nv_mov_b32 v8, {MISC}\nds_read_b64 v[26:27], v8\ns_waitcnt lgkmcnt(0)")
    A.label("K1G_poll")
    FP = OPT.get("fastpolls", 40)
    PFLG = OPT.get("pflg", " sc1")
    A(f"s_cmp_ge_u32 s38, {FP}\ns_cbranch_scc1 K1G_pollB")
    for i in range(8):
        A(f"buffer_load_dwordx4 {vr(32+4*i)}, v{2 if i < 4 else 7}, s[56:59], s36 offen offset:{(i % 4)*1024}{PFLG}" if i != 4 else
          f"v_add_u32 v7, 0x1000, v2\nbuffer_load_dwordx4 {vr(32+4*i)}, v7, s[56:59], s36 offen{PFLG}")
    A("s_branch K1G_pchk")
    A.label("K1G_pollB")
    A("s_sleep 1\nv_add_u32 v7, 0x1000, v2")
    for i in range(8):
        A(f"buffer_load_dwordx4 {vr(32+4*i)}, v{2 if i < 4 else 7}, s[56:59], s69 offen offset:{(i % 4)*1024} sc1")
    A.label("K1G_pchk")
    A("s_waitcnt vmcnt(0)")
    for i in range(8):
        A(f"v_xor_b32 v{64+2*i}, v{34+4*i}, v26\nv_xor_b32 v{65+2*i}, v{35+4*i}, v27")
    A("""
    v_or3_b32 v64, v64, v65, v66
    v_or3_b32 v67, v67, v68, v69
    v_or3_b32 v70, v70, v71, v72
    v_or3_b32 v73, v73, v74, v75
    v_or3_b32 v76, v76, v77, v78
    v_or3_b32 v64, v64, v67, v70
    v_or3_b32 v73, v73, v76, v79
    v_or_b32 v64, v64, v73
    v_cmp_ne_u32 vcc, 0, v64
    s_nop 3
    s_cmp_eq_u64 vcc, 0
    s_cbranch_scc1 K1G_got
    s_add_u32 s38, s38, 1
    s_cmp_lt_u32 s38, 0x40000
    s_cbranch_scc1 K1G_poll
    """)
    A.label("K1G_got")
    A(f"""
    s_mov_b32 s68, 0x3c800000
    s_lshl_b32 s31, s28, 10
    s_add_u32 s31, s31, {MISC + 64}
    v_lshlrev_b32 v29, 3, v0
    v_add_u32 v29, s31, v29
    """)
    for t in range(2):
        b = 32 + 16 * t
        r = 80 + 8 * t
        A(f"""
        v_add_f32 v{r}, v{b}, v{b+4}
        v_add_f32 v{r+1}, v{b+8}, v{b+12}
        v_add_f32 v{r+2}, v{b+1}, v{b+5}
        v_add_f32 v{r+3}, v{b+9}, v{b+13}
        v_add_f32 v{r}, v{r}, v{r+1}
        v_add_f32 v{r+2}, v{r+2}, v{r+3}
        v_mov_b32 v{r+1}, v{r}
        """)
    A("s_nop 1\nv_permlane32_swap_b32 v80, v81\nv_permlane32_swap_b32 v88, v89\ns_nop 1")
    for t in range(2):
        b = 32 + 16 * t
        r = 80 + 8 * t
        A(f"v_add_f32 v{r}, v{r}, v{r+1}\nv_mul_f32 v{r}, 0x3b000000, v{r}")
        for i in range(4):
            A(f"v_fma_f32 v{r+4+i}, v{b+4*i}, s68, -v{r}")
        A(f"v_mul_f32 v{r+4}, v{r+4}, v{r+4}")
        for i in range(1, 4):
            A(f"v_fmac_f32 v{r+4}, v{r+4+i}, v{r+4+i}")
        A(f"v_fmac_f32 v{r+2}, 0x42800000, v{r+4}\nv_mov_b32 v{r+3}, v{r+2}")
    A("s_nop 1\nv_permlane32_swap_b32 v82, v83\nv_permlane32_swap_b32 v90, v91\ns_nop 1")
    for t in range(2):
        r = 80 + 8 * t
        A(f"""
        v_add_f32 v{r+2}, v{r+2}, v{r+3}
        v_mov_b32 v{r+3}, 0x3727c5ac
        v_fmac_f32 v{r+3}, 0x3b000000, v{r+2}
        v_rsq_f32 v{r+1}, v{r+3}
        """)
    A("""
    s_nop 0
    ds_write_b64 v29, v[80:81]
    ds_write_b64 v29, v[88:89] offset:512
    s_waitcnt lgkmcnt(0)
    s_barrier
    s_endpgm
    """)

    A.label("K1G_comp")
    A("""
    s_lshl_b32 s30, s26, 2
    s_add_u32 s30, s30, s3
    s_memrealtime s[70:71]
    s_and_b32 s46, s26, 1
    s_lshl_b32 s46, s46, 2
    s_add_u32 s46, s46, s27
    s_add_u32 s46, s46, s3
    s_add_u32 s46, s46, 1
    s_and_b32 s46, s46, 7
    s_lshl_b32 s46, s46, 16
    s_lshl_b32 s31, s27, 7
    s_add_u32 s46, s46, s31
    v_lshlrev_b32 v9, 10, v0
    s_waitcnt lgkmcnt(0)
    """)
    srd(A, 48, 8, 9, 0x80000)
    srd(A, 64, 16, 17, 256)
    if OPT.get("gtouch", 1):
        A("buffer_load_dword v1, v9, s[48:51], s46 offen")
    A("""
    s_cmp_lg_u32 s3, 0
    s_cbranch_scc1 K1G_noat
    v_mov_b32 v148, s70
    v_mov_b32 v149, s71
    v_mov_b32 v150, 0
    v_mov_b32 v151, 0
    s_lshl_b32 s31, s26, 3
    v_mov_b32 v8, s31
    s_mov_b64 exec, 1
    buffer_atomic_cmpswap_x2 v[148:151], v8, s[64:67], 0 offen sc0 sc1
    s_mov_b64 exec, -1
    """)
    A.label("K1G_noat")
    A("""
    v_bfe_u32 v20, v18, 2, 1
    v_lshlrev_b32 v20, 4, v20
    v_and_b32 v21, 1, v18
    v_lshl_add_u32 v20, v21, 3, v20
    v_lshrrev_b32 v21, 3, v18
    v_lshl_add_u32 v20, v21, 1, v20
    v_bfe_u32 v21, v18, 1, 1
    v_add_u32 v20, v20, v21
    """)
    A(f"""
    v_bfe_u32 v21, v20, 1, 3
    v_xor_b32 v21, v21, v17
    v_lshlrev_b32 v22, 7, v20
    v_lshl_add_u32 v22, v21, 4, v22
    s_lshl_b32 s31, s3, 12
    v_add_u32 v24, s31, v22
    v_xor_b32 v25, 32, v24
    v_xor_b32 v26, 64, v24
    v_xor_b32 v27, 0x60, v24
    v_add_u32 v28, 0x10000, v24
    v_add_u32 v29, 0x10000, v25
    v_add_u32 v30, 0x10000, v26
    v_add_u32 v31, 0x10000, v27
    """)
    A(f"""
    v_lshl_add_u32 v23, v17, 3, v14
    v_lshlrev_b32 v23, 7, v23
    v_lshl_add_u32 v23, v16, 5, v23
    v_and_b32 v21, 1, v15
    v_lshl_add_u32 v23, v21, 4, v23
    v_lshrrev_b32 v21, 1, v15
    v_lshl_add_u32 v23, v21, 3, v23
    v_lshrrev_b32 v21, 1, v14
    v_lshl_add_u32 v8, v21, 6, v23
    v_add_u32 v8, {TB}, v8
    v_xor_b32 v9, 64, v8
    """)
    AC0 = 32
    FB = [64, 76, 88]
    XR = 100
    XF = 116
    for i in range(32):
        A(f"v_mov_b32 v{AC0+i}, 0")
    A(f"""
    s_lshl_b32 s31, s27, 8
    s_add_u32 s31, s31, s30
    s_lshl_b32 s31, s31, 10
    s_add_u32 s32, s31, {HIN_OFF:#x}
    s_add_u32 s34, s31, {HF_OFF:#x}
    s_lshl_b32 s36, s30, 12
    s_lshl_b32 s31, s27, 9
    s_add_u32 s36, s36, s31
    s_add_u32 s37, s36, {ST2_OFF:#x}
    s_add_u32 s36, s36, {ST_OFF:#x}
    s_lshl_b32 s31, s3, 9
    s_add_u32 s31, s31, {MISC + 64}
    v_lshlrev_b32 v5, 3, v0
    v_add_u32 v5, s31, v5
    v_mov_b32 v6, {MISC}
    s_waitcnt lgkmcnt(0)
    """)
    srd(A, 56, 18, 19, WS_SIZE)
    if OPT.get("prewrite", 1):
        A(f"""
        s_mov_b32 exec_hi, 0
        buffer_store_dwordx4 {vr(AC0)}, v2, s[56:59], s36 offen
        s_mov_b32 exec_hi, -1
        """)
    ST = ST0.fork()
    ST.stamp("issued")

    def g_reads(kk):
        c, s_ = kk // 4, kk % 4
        st = c % D
        b = FB[kk % 3]
        off = st * RST
        a = 24 + s_
        if off >= 65536:
            off -= 65536
            a += 4
        L = [f"ds_read_b128 {vr(b)}, v{a} offset:{off}"]
        for ct in range(2):
            for j in range(2):
                L.append(f"ds_read_b64_tr_b16 {vr(b+4+4*ct+2*j, 2)}, v{8+ct} offset:{st*TST + s_*2048 + j*512}")
        return L

    def g_mfmas(kk):
        b = FB[kk % 3]
        return [f"v_mfma_f32_32x32x16_bf16 {vr(AC0+16*ct,16)}, {vr(b+4+4*ct)}, {vr(b)}, {vr(AC0+16*ct,16)}" for ct in range(2)]

    def g_xread():
        for s_ in range(4):
            A(f"ds_read_b128 {vr(XR+4*s_)}, v{28+s_} offset:{XB - 65536}")
        A("ds_read_b64 v[22:23], v6")

    def g_xunpack():
        for d in range(16):
            A(f"v_lshlrev_b32 v{XF+2*d}, 16, v{XR+d}\nv_and_b32 v{XF+2*d+1}, 0xffff0000, v{XR+d}")
    def g_epoch():
        A(f"""
        s_cmp_lg_u32 s3, 0
        s_cbranch_scc1 K1G_noep
        s_waitcnt vmcnt(0)
        v_or_b32 v150, v148, v149
        v_cmp_eq_u32 vcc, 0, v150
        v_mov_b32 v150, s70
        v_mov_b32 v151, s71
        v_cndmask_b32 v148, v148, v150, vcc
        v_cndmask_b32 v149, v149, v151, vcc
        s_mov_b64 exec, 1
        ds_write_b64 v6, v[148:149]
        s_mov_b64 exec, -1
        """)
        A.label("K1G_noep")
    kstep_loop(g_reads, g_mfmas, 5, ST, OPT.get("gst", (0, 3)), {22: g_epoch, 29: g_xread})
    ST.stamp("loop_end")
    g_xunpack()
    V = XF
    for i in range(16):
        A(f"v_pk_add_f32 v[{V+2*i}:{V+2*i+1}], v[{V+2*i}:{V+2*i+1}], v[{AC0+2*i}:{AC0+2*i+1}]")
    T = 64
    for i in range(8):
        A(f"v_pk_add_f32 v[{T+2*i}:{T+2*i+1}], v[{V+4*i}:{V+4*i+1}], v[{V+4*i+2}:{V+4*i+3}]")
    for n in (4, 2, 1):
        for i in range(n):
            A(f"v_pk_add_f32 v[{T+2*i}:{T+2*i+1}], v[{T+2*i}:{T+2*i+1}], v[{T+2*(i+n)}:{T+2*(i+n)+1}]")
    A(f"""
    v_add_f32 v{T}, v{T}, v{T+1}
    v_mov_b32 v{T+1}, v{T}
    s_nop 1
    v_permlane32_swap_b32 v{T}, v{T+1}
    s_nop 1
    v_add_f32 v20, v{T}, v{T+1}
    v_mul_f32 v{T+2}, 0xbc800000, v20
    v_mul_f32 v{T+3}, 0xbc800000, v20
    """)
    for i in range(16):
        A(f"v_pk_add_f32 v[{AC0+2*i}:{AC0+2*i+1}], v[{V+2*i}:{V+2*i+1}], v[{T+2}:{T+3}]")
    A(f"v_pk_mul_f32 v[{T+4}:{T+5}], v[{AC0}:{AC0+1}], v[{AC0}:{AC0+1}]")
    A(f"v_pk_mul_f32 v[{T+6}:{T+7}], v[{AC0+2}:{AC0+3}], v[{AC0+2}:{AC0+3}]")
    for i in range(2, 16):
        t = T + 4 + 2 * (i % 2)
        A(f"v_pk_fma_f32 v[{t}:{t+1}], v[{AC0+2*i}:{AC0+2*i+1}], v[{AC0+2*i}:{AC0+2*i+1}], v[{t}:{t+1}]")
    A(f"""
    v_pk_add_f32 v[{T+4}:{T+5}], v[{T+4}:{T+5}], v[{T+6}:{T+7}]
    v_add_f32 v{T}, v{T+4}, v{T+5}
    v_mov_b32 v{T+1}, v{T}
    s_nop 1
    v_permlane32_swap_b32 v{T}, v{T+1}
    s_nop 1
    v_add_f32 v21, v{T}, v{T+1}
    s_mov_b32 exec_hi, 0
    buffer_store_dwordx4 v[20:23], v2, s[56:59], s36 offen
    buffer_store_dwordx4 v[20:23], v2, s[56:59], s37 offen sc1
    s_mov_b32 exec_hi, -1
    """)
    ST.stamp("stats")
    for d in range(16):
        A(f"v_cvt_pk_bf16_f32 v{T+d}, v{V+2*d}, v{V+2*d+1}")
    for f in range(4):
        A(f"s_add_u32 s31, s32, {f*0x10000}\nbuffer_store_dwordx4 {vr(T+4*f)}, v2, s[56:59], s31 offen{SF}")
    A("s_barrier")
    ST.stamp("got")
    A("""
    ds_read_b64 v[80:81], v5
    s_waitcnt lgkmcnt(0)
    v_mul_f32 v82, v80, v81
    v_mul_f32 v84, 0xbfb8aa3b, v81
    v_mul_f32 v85, 0xbfb8aa3b, v81
    v_mul_f32 v86, 0x3fb8aa3b, v82
    v_mul_f32 v87, 0x3fb8aa3b, v82
    v_sub_f32 v88, 0, v82
    v_sub_f32 v89, 0, v82
    v_mov_b32 v80, v81
    v_mov_b32 v90, 1.0
    v_mov_b32 v91, 1.0
    """)
    E = AC0
    for f in range(4):
        r = range(4 * f, 4 * f + 4)
        for i in r:
            A(f"v_pk_fma_f32 v[{E+2*i}:{E+2*i+1}], v[{V+2*i}:{V+2*i+1}], v[84:85], v[86:87]")
        for i in range(8 * f, 8 * f + 8):
            A(f"v_exp_f32 v{E+i}, v{E+i}")
        for i in r:
            A(f"v_pk_fma_f32 v[{V+2*i}:{V+2*i+1}], v[{V+2*i}:{V+2*i+1}], v[80:81], v[88:89]")
        for i in r:
            A(f"v_pk_add_f32 v[{E+2*i}:{E+2*i+1}], v[{E+2*i}:{E+2*i+1}], v[90:91]")
        for i in range(8 * f, 8 * f + 8):
            A(f"v_rcp_f32 v{E+i}, v{E+i}")
        A("s_nop 0")
        for i in r:
            A(f"v_pk_mul_f32 v[{V+2*i}:{V+2*i+1}], v[{V+2*i}:{V+2*i+1}], v[{E+2*i}:{E+2*i+1}]")
        for i in r:
            A(f"v_cvt_pk_bf16_f32 v{XR+i}, v{V+2*i}, v{V+2*i+1}")
        A(f"s_add_u32 s31, s34, {f*0x10000}\nbuffer_store_dwordx4 {vr(XR+4*f)}, v2, s[56:59], s31 offen{SF}")
    ST.stamp("stored")
    ST.flush(56, 3, 64)
    A("s_endpgm")

    A.label("K1_FZ")
    A("""
    s_lshl_b32 s26, s24, 4
    s_add_u32 s26, s26, s25
    s_sub_u32 s26, s26, 16
    s_cmp_ge_u32 s26, 120
    s_cbranch_scc1 K1_Z
    s_cmp_ge_u32 s26, 116
    s_cbranch_scc1 K1_end
    """)
    D = 4
    RST, TST = 20480, 16384
    TB = D * RST
    A("""
    s_and_b32 s27, s26, 3
    s_lshr_b32 s26, s26, 2
    s_mul_i32 s30, s26, 160
    s_min_u32 s30, s30, 4448
    s_cmp_lt_u32 s3, 4
    s_cbranch_scc1 K1F_comp
    """)
    A(f"""
    s_sub_u32 s28, s3, 4
    s_mul_i32 s31, s28, 80
    s_add_u32 s40, s30, s31
    s_lshl_b32 s40, s40, 10
    s_mul_i32 s41, s28, 10240
    v_xor_b32 v19, v14, v12
    v_lshlrev_b32 v6, 10, v12
    v_lshl_add_u32 v6, v19, 6, v6
    v_lshl_add_u32 v6, v15, 4, v6
    s_lshl_b32 s44, s28, 15
    s_lshl_b32 s31, s27, 8
    s_add_u32 s44, s44, s31
    s_lshl_b32 s45, s28, 13
    s_add_u32 s45, s45, {TB}
    s_add_u32 s46, s26, s27
    s_lshl_b32 s46, s46, 1
    s_waitcnt lgkmcnt(0)
    """)
    if not OPT.get("rotF", 1):
        A("s_mov_b32 s46, 0")
    srd(A, 48, 10, 11, 0x80000)
    srd(A, 52, 12, 13, 4718592)
    q = VmQ(A)

    def f_dma_list(c):
        st = c % D
        L = []
        for i in range(10):
            pre = f"""
            s_add_u32 s42, s46, {c}
            s_and_b32 s42, s42, 7
            s_lshl_b32 s43, s42, 16
            s_lshl_b32 s42, s42, 7
            s_add_u32 s43, s43, s44
            s_add_u32 s42, s42, s40
            """ if i == 0 else ""
            if i < 8:
                L.append((pre + f"s_add_u32 m0, s45, {st*TST + i*1024}\ns_add_u32 s31, s43, {i*4096}",
                          "buffer_load_dwordx4 v6, s[48:51], s31 offen lds", ("T", c, i)))
            L.append((f"s_add_u32 m0, s41, {st*RST + i*1024}\ns_add_u32 s31, s42, {i*8192}",
                      f"buffer_load_dwordx4 v{3 + i % 2}, s[52:55], s31 offen{nt} lds", ("R", c, i)))
        return L
    loader_loop(q, D, f_dma_list, lambda n: ("R", n, 9), None, None, OPT.get("fpro", 2))
    A("s_endpgm")

    A.label("K1F_comp")
    FT = OPT.get("ftouch", 0)
    A(f"""
    s_waitcnt lgkmcnt(0)
    s_and_b32 s28, s3, 1
    s_cmp_eq_u32 s28, 0
    s_cselect_b32 s60, s12, s10
    s_cselect_b32 s61, s13, s11
    s_mov_b32 s62, 0x80000
    s_cselect_b32 s62, 4718592, s62
    s_mov_b32 s63, 0x20000
    s_mov_b32 s65, 0x10000
    s_cselect_b32 s65, 0x80, s65
    s_mov_b32 s66, -1
    s_cselect_b32 s67, 0xff, 0
    s_mul_i32 s31, s27, 40
    s_add_u32 s31, s31, s30
    s_lshl_b32 s31, s31, 10
    s_and_b32 s33, s26, 3
    s_lshl_b32 s33, s33, 14
    s_lshl_b32 s34, s27, 8
    s_add_u32 s33, s33, s34
    s_cmp_eq_u32 s28, 0
    s_cselect_b32 s64, s31, s33
    v_lshlrev_b32 v7, 10, v0
    v_lshrrev_b32 v5, 1, v0
    v_lshlrev_b32 v5, 10, v5
    v_and_b32 v8, 1, v0
    v_lshl_add_u32 v5, v8, 7, v5
    s_cselect_b64 vcc, -1, 0
    s_lshr_b32 s31, s3, 1
    s_mul_i32 s31, s31, s65
    s_add_u32 s64, s64, s31
    v_cndmask_b32 v7, v5, v7, vcc
    """)

    def f_touch(c0s):
        if not FT:
            return
        A("s_mov_b64 exec, s[66:67]")
        for c in c0s:
            A(f"s_mul_i32 s31, s65, {c}\ns_add_u32 s31, s31, s64")
            A("buffer_load_dword v1, v7, s[60:63], s31 offen")
        A("s_mov_b64 exec, -1")
    f_touch(OPT.get("ft0", (1, 3)))
    A(f"""
    v_and_b32 v20, 0x13, v18
    v_bfe_u32 v21, v18, 2, 1
    v_lshl_add_u32 v20, v21, 3, v20
    v_bfe_u32 v21, v18, 3, 1
    v_lshl_add_u32 v20, v21, 2, v20
    v_bfe_u32 v21, v20, 1, 3
    v_xor_b32 v21, v21, v17
    v_lshlrev_b32 v22, 7, v20
    v_lshl_add_u32 v24, v21, 4, v22
    v_xor_b32 v25, 32, v24
    v_xor_b32 v26, 64, v24
    v_xor_b32 v27, 0x60, v24
    v_add_u32 v28, {2*RST}, v24
    v_add_u32 v29, {2*RST}, v25
    v_add_u32 v30, {2*RST}, v26
    v_add_u32 v31, {2*RST}, v27
    v_lshl_add_u32 v23, v17, 3, v14
    v_lshlrev_b32 v23, 8, v23
    v_lshl_add_u32 v23, v16, 5, v23
    v_lshl_add_u32 v23, v15, 3, v23
    v_xor_b32 v21, s3, v14
    v_lshl_add_u32 v9, v21, 6, v23
    v_add_u32 v9, {TB}, v9
    """)
    AC = 32
    FB = [112, 136, 160]
    for i in range(80):
        A(f"v_mov_b32 v{AC+i}, 0")
    A("""
    s_lshl_b32 s33, s27, 2
    s_add_u32 s33, s33, s3
    s_lshl_b32 s33, s33, 5
    """)
    for rt in range(5):
        A(f"""
        s_add_u32 s34, s30, {32*rt}
        s_lshr_b32 s31, s34, 9
        s_bfe_u32 s32, s34, 0x50004
        s_add_u32 s32, s32, s33
        s_mul_i32 s32, s32, 10
        s_add_u32 s32, s32, s31
        s_lshl_b32 s32, s32, 10
        s_add_u32 s{36+2*rt}, s32, {WF_OFF:#x}
        s_add_u32 s{37+2*rt}, s32, {WF_OFF + 10240:#x}
        """)
    A("s_waitcnt lgkmcnt(0)")
    srd(A, 56, 18, 19, WS_SIZE)
    ST = ST0.fork()
    ST.stamp("issued")

    def f_reads(kk):
        c, s_ = kk // 4, kk % 4
        st = c % D
        b = FB[kk % 3]
        a = 24 + s_ + (4 if st >= 2 else 0)
        L = []
        for j in range(2):
            L.append(f"ds_read_b64_tr_b16 {vr(b+20+2*j, 2)}, v9 offset:{st*TST + s_*4096 + j*1024}")
        for rt in range(5):
            L.append(f"ds_read_b128 {vr(b+4*rt)}, v{a} offset:{(st % 2)*RST + rt*4096}")
        return L

    def f_mfmas(kk):
        b = FB[kk % 3]
        return [f"v_mfma_f32_32x32x16_bf16 {vr(AC+16*rt,16)}, {vr(b+4*rt)}, {vr(b+20)}, {vr(AC+16*rt,16)}" for rt in range(5)]
    kstep_loop(f_reads, f_mfmas, 7, ST, (0, 1, 2, 4, 6), {k: (lambda v=v: f_touch(v)) for k, v in OPT.get("ftk", {0: (5,), 4: (6,)}).items()})
    ST.stamp("loop_end")
    A("s_nop 7")
    for rt in range(5):
        for hf in range(2):
            o = 112 + 8 * rt + 4 * hf
            for d in range(4):
                A(f"v_cvt_pk_bf16_f32 v{o+d}, v{AC+16*rt+8*hf+2*d}, v{AC+16*rt+8*hf+2*d+1}")
            A(f"buffer_store_dwordx4 {vr(o)}, v2, s[56:59], s{36+2*rt+hf} offen{SF}")
    ST.flush(56, 3, 160)
    A("s_endpgm")

    A.label("K1_Z")
    A(f"""
    s_cmp_ge_u32 s3, 4
    s_cbranch_scc1 K1_end
    s_sub_u32 s26, s26, 120
    s_lshl_b32 s26, s26, 2
    s_add_u32 s26, s26, s3
    s_lshl_b32 s29, s26, 14
    s_lshl_b32 s30, s3, 14
    v_xor_b32 v3, 64, v2
    v_xor_b32 v4, 0x80, v2
    v_xor_b32 v5, 0xc0, v2
    v_lshl_add_u32 v23, v17, 3, v14
    v_lshlrev_b32 v23, 10, v23
    v_lshl_add_u32 v23, v16, 5, v23
    v_lshl_add_u32 v23, v15, 3, v23
    v_lshl_add_u32 v24, v14, 6, v23
    v_add_u32 v24, s30, v24
    v_xor_b32 v25, 64, v24
    v_xor_b32 v26, 0x80, v24
    v_xor_b32 v27, 0xc0, v24
    s_mul_i32 s32, s26, 10240
    s_add_u32 s32, s32, {WF_OFF + 9*1024:#x}
    s_waitcnt lgkmcnt(0)
    """)
    srd(A, 48, 10, 11, 0x80000)
    srd(A, 56, 18, 19, WS_SIZE)
    for k in range(16):
        A(f"s_add_u32 m0, s30, {k*1024}\ns_add_u32 s31, s29, {k*1024}")
        A(f"buffer_load_dwordx4 v{2 + k % 4}, s[48:51], s31 offen lds")
    A("s_waitcnt vmcnt(0)")
    for g in range(4):
        for i in range(4):
            ntile = 4 * g + i
            A(f"ds_read_b64_tr_b16 v[{32+4*ntile}:{33+4*ntile}], v{24+i} offset:{g*256}")
            A(f"ds_read_b64_tr_b16 v[{34+4*ntile}:{35+4*ntile}], v{24+i} offset:{g*256 + 4096}")
        A("s_waitcnt lgkmcnt(0)")
        for i in range(4):
            ntile = 4 * g + i
            A(f"s_add_u32 s31, s32, {ntile*327680}\nbuffer_store_dwordx4 {vr(32+4*ntile)}, v2, s[56:59], s31 offen{SF}")
    A.label("K1_end")
    A("s_endpgm")


def kd(A, name, vgpr, accum, sgpr=102):
    A.raw(f""".p2align 6
.amdhsa_kernel {name}
  .amdhsa_next_free_vgpr {vgpr}
  .amdhsa_next_free_sgpr {sgpr}
  .amdhsa_accum_offset {accum}
  .amdhsa_group_segment_fixed_size 0
  .amdhsa_kernarg_size 72
  .amdhsa_user_sgpr_count 2
  .amdhsa_user_sgpr_kernarg_segment_ptr 1
  .amdhsa_system_sgpr_workgroup_id_x 1
.end_amdhsa_kernel""")


def main():
    for a in sys.argv[1:]:
        k, v = a.split("=")
        OPT[k] = eval(v)
    A = Asm()
    A.raw("; @launch kernel=k1_kernel grid=(256,1,1) block=(384,1,1) lds=147456")
    for _ in range(OPT.get("k2rep", 1)):
        A.raw("; @launch kernel=k2_kernel grid=(256,1,1) block=(%d,1,1) lds=65536" % (320 if OPT.get("hw", 0) else 256))
    A.raw('.amdgcn_target "amdgcn-amd-amdhsa--gfx950"')
    A.raw(".text")
    gen_k1(A)
    gen_k2(A)
    A.raw('.section .rodata,"a"')
    kd(A, "k1_kernel", 184, 184)
    kd(A, "k2_kernel", 256, 256)
    sys.stdout.write(A.text())


if __name__ == "__main__":
    main()
```

```python
import sys

HF_OFF = 0x1000
HIN_OFF = 0x300000
WF_OFF = 0x600000
ST_OFF = 0xC00000
ST2_OFF = 0xD00000
WS_SIZE = 0x1000000
OOB = 0x40000000

OPT = dict(nt_in=False, stamps=False)


class Asm:
    def __init__(self):
        self.L = []

    def __call__(self, s):
        for line in s.strip("\n").split("\n"):
            self.L.append("  " + line.strip())

    def label(self, l):
        self.L.append(l + ":")

    def raw(self, s):
        self.L.append(s)

    def text(self):
        return "\n".join(self.L) + "\n"


def vr(b, n=4):
    if b >= 256:
        b -= 256
        return "a[%d:%d]" % (b, b + n - 1) if n > 1 else "a%d" % b
    return "v[%d:%d]" % (b, b + n - 1) if n > 1 else "v%d" % b


def srd(A, d, lo, hi, size):
    A(f"s_mov_b32 s{d}, s{lo}\ns_mov_b32 s{d+1}, s{hi}\ns_mov_b32 s{d+2}, {size:#x}\ns_mov_b32 s{d+3}, 0x20000")


DBG_OFF = 0xE00000


class Stamps:
    SB = 72

    def __init__(self, A, kern):
        self.A = A
        self.kern = kern
        self.n = 0
        self.names = []

    def start(self):
        if OPT["stamps"]:
            self.A("s_memrealtime s[100:101]")
            self.stamp("start")

    def stamp(self, name):
        if OPT["stamps"]:
            assert self.n < 13
            self.A(f"s_memtime s[{self.SB+2*self.n}:{self.SB+2*self.n+1}]")
            self.n += 1
            self.names.append(name)

    def fork(self):
        o = Stamps(self.A, self.kern)
        o.n = self.n
        o.names = list(self.names)
        return o

    def flush(self, srdreg, wave_sgpr, tmpv):
        if not OPT["stamps"]:
            return
        A = self.A
        A("s_waitcnt vmcnt(0)")
        self.stamp("end")
        A("s_mov_b32 s99, s100")
        A("s_memrealtime s[100:101]")
        A("s_waitcnt lgkmcnt(0)")
        A(f"v_mov_b32 v{tmpv}, s99")
        A(f"v_mov_b32 v{tmpv+15}, s100")
        for i in range(1, 15):
            if i < self.n:
                A(f"s_sub_u32 s{self.SB+2*i}, s{self.SB+2*i}, s{self.SB}\nv_mov_b32 v{tmpv+i}, s{self.SB+2*i}")
            else:
                A(f"v_mov_b32 v{tmpv+i}, 0")
        A(f"""
        s_lshl_b32 s{self.SB}, s2, 3
        s_add_u32 s{self.SB}, s{self.SB}, s{wave_sgpr}
        s_lshl_b32 s{self.SB}, s{self.SB}, 6
        s_add_u32 s{self.SB}, s{self.SB}, {DBG_OFF + self.kern*256*8*64:#x}
        v_mov_b32 v{tmpv+16}, 0
        s_mov_b64 exec, 1
        """)
        for j in range(4):
            A(f"buffer_store_dwordx4 v[{tmpv+4*j}:{tmpv+4*j+3}], v{tmpv+16}, s[{srdreg}:{srdreg+3}], s{self.SB} offen offset:{16*j}")
        sys.stderr.write("stamps k%d: %s\n" % (self.kern, self.names))


class VmQ:
    def __init__(self, A):
        self.A = A
        self.n = 0
        self.done = 0
        self.tag = {}

    def issue(self, text, tag=None):
        self.A(text)
        self.n += 1
        if tag is not None:
            self.tag[tag] = self.n
        assert self.n - self.done <= 63, "vmcnt overflow"

    def need(self, *tags):
        idx = max(self.tag[t] for t in tags)
        if idx > self.done:
            self.A("s_waitcnt vmcnt(%d)" % (self.n - idx))
            self.done = idx
            return True
        return False

    def outstanding(self):
        return self.n - self.done


def gen_k2(A):
    NS = 2
    TR_OFF = 0
    PF = 3
    ACC = 16
    STG = [96, 176]
    A.raw(".globl k2_kernel\n.p2align 8\n.type k2_kernel,@function")
    A.label("k2_kernel")
    A("""
    s_cmp_ge_u32 s2, 256
    s_cbranch_scc1 K2_end
    s_load_dwordx2 s[4:5], s[0:1], 64
    s_load_dwordx2 s[6:7], s[0:1], 0
    s_load_dwordx2 s[20:21], s[0:1], 48
    """)
    ST = Stamps(A, 1)
    ST.start()
    A("""
    v_lshrrev_b32 v1, 6, v0
    v_and_b32 v0, 63, v0
    s_and_b32 s24, s2, 7
    v_readfirstlane_b32 s3, v1
    s_lshr_b32 s25, s2, 3
    s_and_b32 s26, s24, 1
    s_lshr_b32 s27, s24, 1
    s_and_b32 s28, s25, 7
    s_lshr_b32 s29, s25, 3
    s_lshl_b32 s27, s27, 2
    s_add_u32 s27, s27, s29
    s_lshl_b32 s26, s26, 5
    s_lshl_b32 s29, s28, 2
    s_add_u32 s26, s26, s29
    """)
    A(f"""
    v_lshlrev_b32 v2, 4, v0
    v_add_u32 v3, 0x1000, v2
    v_add_u32 v4, 0x2000, v2
    v_add_u32 v5, 0x400, v2
    v_add_u32 v7, 0x1400, v2
    s_cmp_eq_u32 s28, 0
    s_cselect_b32 s30, {OOB:#x}, 0
    s_cmp_eq_u32 s28, 7
    s_cselect_b32 s31, {OOB:#x}, 0
    v_add_u32 v6, s30, v2
    v_add_u32 v7, s31, v7
    s_lshl_b32 s32, s3, 9
    s_add_u32 s32, s32, s26
    s_lshl_b32 s32, s32, 10
    s_add_u32 s33, s32, {HIN_OFF:#x}
    s_add_u32 s32, s32, {HF_OFF - 1024:#x}
    s_lshl_b32 s34, s27, 5
    s_lshl_b32 s35, s3, 3
    s_add_u32 s34, s34, s35
    s_mul_i32 s34, s34, 10240
    s_add_u32 s34, s34, {WF_OFF:#x}
    """)
    A("""
    v_lshrrev_b32 v1, 2, v0
    v_lshlrev_b32 v1, 10, v1
    v_and_b32 v8, 3, v0
    v_lshlrev_b32 v8, 4, v8
    v_add_u32 v1, v1, v8
    s_add_u32 s36, s26, s3
    s_lshl_b32 s36, s36, 15
    s_lshl_b32 s37, s27, 6
    s_add_u32 s36, s36, s37
    s_add_u32 s37, s36, 0x4000
    s_waitcnt lgkmcnt(0)
    """)
    srd(A, 8, 4, 5, WS_SIZE)
    srd(A, 12, 6, 7, 0x200000)
    srd(A, 16, 20, 21, 0x200000)
    q = VmQ(A)
    names = ["A0", "B0", "A1", "B3", "A2", "B6", "A3", "A4", "A5", "B1", "B4", "B7", "B9", "Z0", "Z1", "Z2", "Z3", "B2", "B5", "B8"]
    roff = {n: 4 * i for i, n in enumerate(names)}

    def load_text(s, n):
        r = vr(STG[s % NS] + roff[n])
        k = int(n[1])
        if n[0] == "A":
            if k == 0:
                return f"buffer_load_dwordx4 {r}, v6, s[8:11], s32 offen"
            if k == 5:
                return f"buffer_load_dwordx4 {r}, v7, s[8:11], s32 offen"
            return f"buffer_load_dwordx4 {r}, v5, s[8:11], s32 offen offset:{(k-1)*1024}"
        if n[0] == "Z":
            return f"buffer_load_dwordx4 {r}, v2, s[8:11], s33 offen offset:{k*1024}"
        return f"buffer_load_dwordx4 {r}, v{2 + k // 4}, s[8:11], s34 offen offset:{(k % 4)*1024}"

    def adv():
        A("s_add_u32 s32, s32, 0x10000\ns_add_u32 s33, s33, 0x10000\ns_add_u32 s34, s34, 10240")

    TD = 0
    HW = OPT.get("hw", 0)
    if HW:
        A(f"""
        s_cmp_lg_u32 s3, 4
        s_cbranch_scc1 K2_main
        s_sub_u32 s32, s32, {4*8*65536}
        s_sub_u32 s33, s33, {4*8*65536}
        s_sub_u32 s34, s34, {4*8*10240}
        s_mul_i32 s38, s28, 1280
        s_add_u32 s38, s38, s34
        s_lshr_b32 s39, s25, 3
        s_lshl_b32 s39, s39, 10
        s_add_u32 s40, s39, s32
        s_add_u32 s40, s40, 1024
        s_add_u32 s41, s39, s33
        v_and_b32 v20, 31, v0
        v_lshlrev_b32 v21, 7, v20
        v_add_u32 v21, s38, v21
        v_mov_b32 v22, 10240
        v_and_b32 v23, 7, v0
        v_lshlrev_b32 v23, 7, v23
        v_add_u32 v24, s40, v23
        v_add_u32 v23, s41, v23
        v_cmp_gt_u32 vcc, 24, v20
        s_nop 1
        v_cndmask_b32 v23, v23, v24, vcc
        v_mov_b32 v24, 0x10000
        v_cmp_gt_u32 vcc, 16, v20
        s_nop 1
        v_cndmask_b32 v16, v23, v21, vcc
        v_cndmask_b32 v17, v24, v22, vcc
        v_lshrrev_b32 v20, 5, v0
        v_lshlrev_b32 v18, 3, v17
        v_mul_u32_u24 v20, v20, v18
        v_add_u32 v16, v16, v20
        v_lshl_add_u32 v19, v18, 1, v16
        s_mov_b32 exec_lo, 0xffff03ff
        s_mov_b32 exec_hi, 0xffff03ff
        """)
        hs = OPT.get("hstart", 2)
        for _ in range(hs - 1):
            A("v_add_u32 v16, v16, v17\nv_add_u32 v19, v19, v17")
        for st in range(hs, 8):
            if st > hs:
                A("s_barrier")
            A("v_add_u32 v16, v16, v17\nv_add_u32 v19, v19, v17")
            A("buffer_load_dword v20, v16, s[8:11], 0 offen\nbuffer_load_dword v21, v19, s[8:11], 0 offen")
        A("s_endpgm")
        A.label("K2_main")
    PFL = OPT.get("pfl", 20)
    names7 = ["A0", "B0", "A1", "B3", "A2", "B6", "A3", "B1", "B4", "B7", "B9", "Z0", "Z1", "B2", "B5", "B8", "A4", "A5", "Z2", "Z3"]
    EP = OPT.get("ep", 1)
    allloads = [(s_, n) for s_ in range(8) for n in (names7 if (s_ == 7 and EP) else names)]
    nxt = [0]

    def issue_next():
        t = allloads[nxt[0]]
        q.issue(load_text(*t), t)
        nxt[0] += 1
        if nxt[0] % 20 == 0 and nxt[0] < 160:
            adv()
    nt = " nt" if OPT["nt_in"] else ""
    for i in range(PFL):
        issue_next()
        if i < 20:
            for j in range(4):
                A(f"v_mov_b32 v{ACC + 4*i + j}, 0")
    for i in range(4 * min(PFL, 20), 80):
        A(f"v_mov_b32 v{ACC + i}, 0")
    A("s_nop 1")
    ST.stamp("issued")
    xf_done = False

    def epi_rows(rows):
        L = []
        for r in rows:
            E = ACC + 20 * r
            L += [f"v_permlane32_swap_b32 v{E+0}, v{E+19}",
                  f"v_add_f32 v{E+3}, v{E+3}, v{E+18}",
                  f"v_add_f32 v{E+16}, v{E+16}, v{E+1}",
                  f"v_cndmask_b32 v{E+19}, 0, v{E+19}, s[40:41]",
                  f"v_cndmask_b32 v{E+0}, 0, v{E+0}, s[42:43]",
                  f"v_add_f32 v{E+17}, v{E+17}, v{E+19}",
                  f"v_add_f32 v{E+2}, v{E+2}, v{E+0}"]
            for j in range(4):
                L.append(f"ds_write_b128 v96, v[{E+2+4*j}:{E+5+4*j}] offset:{r*16384 + j*1024}")
        return L
    for s in range(8):
        if s in (1, 2, 4, 6):
            ST.stamp("stage%d" % s)
        if HW and 1 <= s < 8 - OPT.get("hstart", 2):
            A("s_barrier")
        base = STG[s % NS]
        seq = []
        for rows in ([(0, 1), (2, 3)] if (s == 7 and EP) else [(0, 1, 2, 3)]):
            for dj in range(3):
                for r in rows:
                    for di in range(3):
                        seq.append((r, dj, "A%d" % (r + di), "B%d" % (di * 3 + dj)))
                    if dj == 1:
                        seq.append((r, dj, "Z%d" % r, "B9"))
        side = []
        if s == 7 and EP:
            A("s_lshl_b32 s38, s3, 12\nv_add_u32 v96, s38, v2\ns_mov_b32 s40, -1\ns_mov_b32 s41, 0\ns_mov_b32 s42, 0\ns_mov_b32 s43, -1")
            side = epi_rows((0, 1))
        for mi, (r, dj, an, bn) in enumerate(seq):
            if s == 7 and EP and mi > 0 and seq[mi - 1][:2] != (r, dj):
                A("s_nop 3")
            if TD and mi == 1 and s + TD < 8:
                touch()
            q.need((s, an), (s, bn))
            d = ACC + 20 * r + (4 - 2 * dj)
            if OPT.get("m16"):
                dd = ACC + 20 * r + 8 * (mi % 2)
                A(f"v_mfma_f32_16x16x32_bf16 {vr(dd,4)}, {vr(base+roff[an])}, {vr(base+roff[bn])}, {vr(dd,4)}")
                A(f"v_mfma_f32_16x16x32_bf16 {vr(dd+4,4)}, {vr(base+roff[bn])}, {vr(base+roff[an])}, {vr(dd+4,4)}")
            elif not OPT.get("nomfma"):
                A(f"v_mfma_f32_32x32x16_bf16 {vr(d,16)}, {vr(base+roff[an])}, {vr(base+roff[bn])}, {vr(d,16)}")
            tgt = min(160, PFL + s * 20 + (mi + 1) // 2)
            k = 0
            while nxt[0] < tgt:
                assert allloads[nxt[0]][0] < s + NS, "register ring overrun"
                issue_next()
                k += 1
            if nxt[0] == 160 and not xf_done:
                q.issue(f"buffer_load_dwordx4 v[8:11], v1, s[12:15], s36 offen{nt}", "xf0")
                q.issue(f"buffer_load_dwordx4 v[12:15], v1, s[12:15], s37 offen{nt}", "xf1")
                xf_done = True
                k += 1
            if s == 7 and EP and mi >= 26 and side:
                for _ in range(2):
                    if side:
                        A(side.pop(0))
                k += 1
            if k == 0:
                A("s_nop 0")
        for t in side:
            A(t)
    ST.stamp("loop_end")
    if EP:
        A("s_nop 7")
        for t in epi_rows((2,)):
            A(t)
        for t in epi_rows((3,)):
            A(t)
    else:
        A("s_nop 15")
        A("s_lshl_b32 s38, s3, 12\nv_add_u32 v96, s38, v2\ns_mov_b32 s40, -1\ns_mov_b32 s41, 0\ns_mov_b32 s42, 0\ns_mov_b32 s43, -1")
        for t in epi_rows((0, 1, 2, 3)):
            A(t)
    A("s_lshl_b32 s38, s3, 14\nv_add_u32 v97, s38, v2")
    A("""
    v_and_b32 v98, 31, v0
    v_lshlrev_b32 v98, 2, v98
    v_lshrrev_b32 v99, 5, v0
    v_lshlrev_b32 v99, 11, v99
    v_add3_u32 v98, v98, v99, s38
    v_lshrrev_b32 v99, 2, v0
    v_lshlrev_b32 v99, 7, v99
    v_and_b32 v164, 3, v0
    v_lshlrev_b32 v164, 5, v164
    v_add3_u32 v99, v99, v164, s38
    """)
    A("s_waitcnt lgkmcnt(0)\ns_barrier")
    ST.stamp("bar")
    for j in range(4):
        for w in range(4):
            A(f"ds_read_b128 v[{100+16*w+4*j}:{103+16*w+4*j}], v97 offset:{w*4096 + j*1024}")
    q.need("xf0", "xf1")
    for it in range(2):
        for d in range(4):
            x = 8 + 4 * it + d
            A(f"v_lshlrev_b32 v{180+8*it+2*d}, 16, v{x}\nv_and_b32 v{181+8*it+2*d}, 0xffff0000, v{x}")

    def pk(d, a, b):
        A(f"v_pk_add_f32 v[{d}:{d+1}], v[{a}:{a+1}], v[{b}:{b+1}]")
    for j in range(4):
        A(f"s_waitcnt lgkmcnt({12 - 4*j if j < 3 else 0})" if j == 0 else f"s_waitcnt lgkmcnt({min(15, 12 - 4*j + 4*j)})")
        for h in range(2):
            o = 4 * j + 2 * h
            pk(100 + o, 100 + o, 116 + o)
            pk(132 + o, 132 + o, 148 + o)
        for h in range(2):
            o = 4 * j + 2 * h
            pk(100 + o, 100 + o, 132 + o)
        for i in range(4 * j, 4 * j + 4):
            p, qq = i % 2, i // 2
            A(f"ds_write_b32 v98, v{100+i} offset:{TR_OFF + (8*p + qq)*128}")
    for it in range(2):
        A(f"ds_read_b128 v[{116+8*it}:{119+8*it}], v99 offset:{TR_OFF + it*2048}")
        A(f"ds_read_b128 v[{120+8*it}:{123+8*it}], v99 offset:{TR_OFF + it*2048+16}")
    OF = OPT.get("of", "")
    for it in range(2):
        A(f"s_waitcnt lgkmcnt({2 - 2*it})")
        for d in range(4):
            pk(116 + 8 * it + 2 * d, 116 + 8 * it + 2 * d, 180 + 8 * it + 2 * d)
        for d in range(4):
            A(f"v_cvt_pk_bf16_f32 v{148+4*it+d}, v{116+8*it+2*d}, v{117+8*it+2*d}")
        A(f"buffer_store_dwordx4 v[{148+4*it}:{151+4*it}], v1, s[16:19], s{36+it} offen{OF}")
    ST.flush(8, 3, 100)
    if OPT.get("dbgout"):
        A(f"""
        s_cmp_lg_u32 s2, 0
        s_cbranch_scc1 K2_end
        s_cmp_lg_u32 s3, 0
        s_cbranch_scc1 K2_end
        s_load_dwordx2 s[40:41], s[0:1], 56
        v_mov_b32 v130, 0
        s_mov_b32 s44, {DBG_OFF:#x}
        s_mov_b32 s45, {DBG_OFF + 128*8*64:#x}
        buffer_load_dword v120, v130, s[8:11], s44 offen
        buffer_load_dword v121, v130, s[8:11], s44 offen offset:60
        buffer_load_dword v122, v130, s[8:11], s45 offen
        buffer_load_dword v123, v130, s[8:11], s45 offen offset:60
        buffer_load_dword v124, v130, s[8:11], s44 offen offset:32
        buffer_load_dword v125, v130, s[8:11], s45 offen offset:32
        buffer_load_dword v126, v130, s[8:11], s44 offen offset:8
        buffer_load_dword v127, v130, s[8:11], s45 offen offset:8
        s_waitcnt vmcnt(0) lgkmcnt(0)
        """)
        srd(A, 52, 40, 41, 256)
        A("""
        v_sub_u32 v121, v121, v120
        v_sub_u32 v122, v122, v120
        v_sub_u32 v123, v123, v120
        v_sub_u32 v128, v100, v120
        v_sub_u32 v129, v115, v120
        v_mov_b32 v120, v108
        v_mov_b32 v131, v101
        s_nop 1
        buffer_store_dwordx4 v[120:123], v130, s[52:55], 0 offen
        buffer_store_dwordx4 v[124:127], v130, s[52:55], 0 offen offset:16
        buffer_store_dwordx4 v[128:131], v130, s[52:55], 0 offen offset:32
        """)
    A.label("K2_end")
    A("s_endpgm")


def gen_k1(A):
    nt = " nt" if OPT["nt_in"] else ""
    SF = OPT.get("sf", " sc1")
    A.raw(".globl k1_kernel\n.p2align 8\n.type k1_kernel,@function")
    A.label("k1_kernel")
    A("""
    s_cmp_ge_u32 s2, 256
    s_cbranch_scc1 K1_end
    s_load_dwordx4 s[4:7], s[0:1], 8
    s_load_dwordx4 s[8:11], s[0:1], 24
    s_load_dwordx2 s[12:13], s[0:1], 40
    s_load_dwordx4 s[16:19], s[0:1], 56
    """)
    ST0 = Stamps(A, 0)
    ST0.start()
    A("""
    v_lshrrev_b32 v1, 6, v0
    v_and_b32 v0, 63, v0
    s_and_b32 s24, s2, 7
    v_readfirstlane_b32 s3, v1
    s_lshr_b32 s25, s2, 3
    """)
    A("""
    v_lshlrev_b32 v2, 4, v0
    v_lshrrev_b32 v10, 3, v0
    v_and_b32 v11, 7, v0
    v_lshrrev_b32 v12, 4, v0
    v_xor_b32 v13, v11, v12
    v_lshlrev_b32 v3, 10, v10
    v_lshl_add_u32 v3, v13, 4, v3
    v_xor_b32 v4, 64, v3
    v_bfe_u32 v14, v0, 2, 2
    v_and_b32 v15, 3, v0
    v_and_b32 v16, 1, v12
    v_lshrrev_b32 v17, 5, v0
    v_and_b32 v18, 31, v0
    s_cmp_ge_u32 s25, 16
    s_cbranch_scc1 K1_FZ
    """)

    def loader_loop(q, D, dma_list, last_tag, extra_after=None, pre_barrier=None, npro=None):
        nxt = [0]

        def issue_to(lim):
            while nxt[0] <= lim and nxt[0] < 8:
                c = nxt[0]
                for e in dma_list(c):
                    A(e[0])
                    q.issue(e[1], e[2])
                if extra_after and c in extra_after:
                    extra_after[c]()
                nxt[0] += 1
        issue_to((D - 2 if npro is None else npro) - 1)
        for n in range(8):
            q.need(last_tag(n))
            if pre_barrier and n in pre_barrier:
                pre_barrier[n]()
            A("s_barrier")
            issue_to(n - 2 + D)

    def kstep_loop(reads, mfmas, nrd, ST, stamp_at, fill=None):
        def bar(kk):
            if kk % 4 == 0:
                A("s_barrier")
                if kk // 4 in stamp_at:
                    ST.stamp("bar%d" % (kk // 4))
        for kk in (0, 1):
            bar(kk)
            for r in reads(kk):
                A(r)
        for kk in range(32):
            A(f"s_waitcnt lgkmcnt({nrd if kk + 1 < 32 else 0})")
            rl = reads(kk + 2) if kk + 2 < 32 else []
            ml = mfmas(kk)
            per = -(-len(rl) // len(ml)) if rl else 0
            for i, m in enumerate(ml):
                A(m)
                if i == 0 and rl:
                    bar(kk + 2)
                for r in rl[i * per:(i + 1) * per]:
                    A(r)
            if fill and kk in fill:
                fill[kk]()

    D = 5
    RST, TST = 16384, 8192
    TB = D * RST
    XB = TB + D * TST
    MISC = XB + 16384
    A("""
    s_lshl_b32 s26, s24, 1
    s_lshr_b32 s27, s25, 3
    s_add_u32 s26, s26, s27
    s_and_b32 s27, s25, 7
    s_cmp_lt_u32 s3, 4
    s_cbranch_scc1 K1G_comp
    """)
    A(f"""
    s_sub_u32 s28, s3, 4
    s_lshl_b32 s40, s26, 17
    s_lshl_b32 s31, s28, 16
    s_add_u32 s40, s40, s31
    s_lshl_b32 s41, s28, 13
    v_lshrrev_b32 v19, 2, v11
    v_xor_b32 v19, v19, v16
    v_lshlrev_b32 v6, 10, v10
    v_lshl_add_u32 v6, v19, 6, v6
    v_lshl_add_u32 v6, v15, 4, v6
    s_lshl_b32 s44, s28, 15
    s_lshl_b32 s31, s27, 7
    s_add_u32 s44, s44, s31
    s_add_u32 s47, s40, s31
    s_lshl_b32 s45, s28, 12
    s_add_u32 s45, s45, {TB}
    s_and_b32 s46, s26, 1
    s_lshl_b32 s46, s46, 2
    s_add_u32 s46, s46, s27
    s_waitcnt lgkmcnt(0)
    """)
    srd(A, 48, 8, 9, 0x80000)
    srd(A, 52, 6, 7, 0x200000)
    q = VmQ(A)

    def g_dma_list(c):
        st = c % D
        L = []
        for i in range(4):
            pre = f"""
            s_add_u32 s42, s46, {c}
            s_and_b32 s42, s42, 7
            s_lshl_b32 s43, s42, 16
            s_lshl_b32 s42, s42, 7
            s_add_u32 s43, s43, s44
            s_add_u32 s42, s42, s40
            """ if i == 0 else ""
            L.append((pre + f"s_add_u32 m0, s45, {st*TST + i*1024}\ns_add_u32 s31, s43, {i*8192}",
                      "buffer_load_dwordx4 v6, s[48:51], s31 offen lds", ("T", c, i)))
            for g in (2 * i, 2 * i + 1):
                L.append((f"s_add_u32 m0, s41, {st*RST + g*1024}\ns_add_u32 s31, s42, {g*8192}",
                          f"buffer_load_dwordx4 v{3 + g % 2}, s[52:55], s31 offen{nt} lds", ("R", c, g)))
        return L

    def g_after0():
        srd(A, 56, 18, 19, WS_SIZE)
        srd(A, 60, 4, 5, 0x200000)
        A(f"""
        s_lshl_b32 s36, s26, 2
        s_lshl_b32 s31, s28, 1
        s_add_u32 s36, s36, s31
        s_lshl_b32 s36, s36, 12
        s_add_u32 s69, s36, {ST2_OFF:#x}
        s_add_u32 s36, s36, {ST_OFF:#x}
        v_lshlrev_b32 v5, 7, v0
        """)

    def g_after6():
        for g in range(8):
            A(f"s_add_u32 m0, s41, {XB + g*1024}\ns_add_u32 s31, s47, {g*8192}")
            q.issue(f"buffer_load_dwordx4 v{3 + g % 2}, s[60:63], s31 offen{nt} lds", ("X", g))

    loader_loop(q, D, g_dma_list, lambda n: ("R", n, 7), {0: g_after0, 6: g_after6}, None, OPT.get("gpro", 3))
    A(f"s_mov_b32 s38, 0\nv_mov_b32 v8, {MISC}\nds_read_b64 v[26:27], v8\ns_waitcnt lgkmcnt(0)")
    A.label("K1G_poll")
    FP = OPT.get("fastpolls", 40)
    PFLG = OPT.get("pflg", " sc1")
    A(f"s_cmp_ge_u32 s38, {FP}\ns_cbranch_scc1 K1G_pollB")
    for i in range(8):
        A(f"buffer_load_dwordx4 {vr(32+4*i)}, v{2 if i < 4 else 7}, s[56:59], s36 offen offset:{(i % 4)*1024}{PFLG}" if i != 4 else
          f"v_add_u32 v7, 0x1000, v2\nbuffer_load_dwordx4 {vr(32+4*i)}, v7, s[56:59], s36 offen{PFLG}")
    A("s_branch K1G_pchk")
    A.label("K1G_pollB")
    A("s_sleep 1\nv_add_u32 v7, 0x1000, v2")
    for i in range(8):
        A(f"buffer_load_dwordx4 {vr(32+4*i)}, v{2 if i < 4 else 7}, s[56:59], s69 offen offset:{(i % 4)*1024} sc1")
    A.label("K1G_pchk")
    A("s_waitcnt vmcnt(0)")
    for i in range(8):
        A(f"v_xor_b32 v{64+2*i}, v{34+4*i}, v26\nv_xor_b32 v{65+2*i}, v{35+4*i}, v27")
    A("""
    v_or3_b32 v64, v64, v65, v66
    v_or3_b32 v67, v67, v68, v69
    v_or3_b32 v70, v70, v71, v72
    v_or3_b32 v73, v73, v74, v75
    v_or3_b32 v76, v76, v77, v78
    v_or3_b32 v64, v64, v67, v70
    v_or3_b32 v73, v73, v76, v79
    v_or_b32 v64, v64, v73
    v_cmp_ne_u32 vcc, 0, v64
    s_nop 3
    s_cmp_eq_u64 vcc, 0
    s_cbranch_scc1 K1G_got
    s_add_u32 s38, s38, 1
    s_cmp_lt_u32 s38, 0x40000
    s_cbranch_scc1 K1G_poll
    """)
    A.label("K1G_got")
    A(f"""
    s_mov_b32 s68, 0x3c800000
    s_lshl_b32 s31, s28, 10
    s_add_u32 s31, s31, {MISC + 64}
    v_lshlrev_b32 v29, 3, v0
    v_add_u32 v29, s31, v29
    """)
    for t in range(2):
        b = 32 + 16 * t
        r = 80 + 8 * t
        A(f"""
        v_add_f32 v{r}, v{b}, v{b+4}
        v_add_f32 v{r+1}, v{b+8}, v{b+12}
        v_add_f32 v{r+2}, v{b+1}, v{b+5}
        v_add_f32 v{r+3}, v{b+9}, v{b+13}
        v_add_f32 v{r}, v{r}, v{r+1}
        v_add_f32 v{r+2}, v{r+2}, v{r+3}
        v_mov_b32 v{r+1}, v{r}
        """)
    A("s_nop 1\nv_permlane32_swap_b32 v80, v81\nv_permlane32_swap_b32 v88, v89\ns_nop 1")
    for t in range(2):
        b = 32 + 16 * t
        r = 80 + 8 * t
        A(f"v_add_f32 v{r}, v{r}, v{r+1}\nv_mul_f32 v{r}, 0x3b000000, v{r}")
        for i in range(4):
            A(f"v_fma_f32 v{r+4+i}, v{b+4*i}, s68, -v{r}")
        A(f"v_mul_f32 v{r+4}, v{r+4}, v{r+4}")
        for i in range(1, 4):
            A(f"v_fmac_f32 v{r+4}, v{r+4+i}, v{r+4+i}")
        A(f"v_fmac_f32 v{r+2}, 0x42800000, v{r+4}\nv_mov_b32 v{r+3}, v{r+2}")
    A("s_nop 1\nv_permlane32_swap_b32 v82, v83\nv_permlane32_swap_b32 v90, v91\ns_nop 1")
    for t in range(2):
        r = 80 + 8 * t
        A(f"""
        v_add_f32 v{r+2}, v{r+2}, v{r+3}
        v_mov_b32 v{r+3}, 0x3727c5ac
        v_fmac_f32 v{r+3}, 0x3b000000, v{r+2}
        v_rsq_f32 v{r+1}, v{r+3}
        """)
    A("""
    s_nop 0
    ds_write_b64 v29, v[80:81]
    ds_write_b64 v29, v[88:89] offset:512
    s_waitcnt lgkmcnt(0)
    s_barrier
    s_endpgm
    """)

    A.label("K1G_comp")
    A("""
    s_lshl_b32 s30, s26, 2
    s_add_u32 s30, s30, s3
    s_memrealtime s[70:71]
    s_and_b32 s46, s26, 1
    s_lshl_b32 s46, s46, 2
    s_add_u32 s46, s46, s27
    s_add_u32 s46, s46, s3
    s_add_u32 s46, s46, 1
    s_and_b32 s46, s46, 7
    s_lshl_b32 s46, s46, 16
    s_lshl_b32 s31, s27, 7
    s_add_u32 s46, s46, s31
    v_lshlrev_b32 v9, 10, v0
    s_waitcnt lgkmcnt(0)
    """)
    srd(A, 48, 8, 9, 0x80000)
    srd(A, 64, 16, 17, 256)
    if OPT.get("gtouch", 0):
        A("buffer_load_dword v1, v9, s[48:51], s46 offen")
    A("""
    s_cmp_lg_u32 s3, 0
    s_cbranch_scc1 K1G_noat
    v_mov_b32 v148, s70
    v_mov_b32 v149, s71
    v_mov_b32 v150, 0
    v_mov_b32 v151, 0
    s_lshl_b32 s31, s26, 3
    v_mov_b32 v8, s31
    s_mov_b64 exec, 1
    buffer_atomic_cmpswap_x2 v[148:151], v8, s[64:67], 0 offen sc0 sc1
    s_mov_b64 exec, -1
    """)
    A.label("K1G_noat")
    A("""
    v_bfe_u32 v20, v18, 2, 1
    v_lshlrev_b32 v20, 4, v20
    v_and_b32 v21, 1, v18
    v_lshl_add_u32 v20, v21, 3, v20
    v_lshrrev_b32 v21, 3, v18
    v_lshl_add_u32 v20, v21, 1, v20
    v_bfe_u32 v21, v18, 1, 1
    v_add_u32 v20, v20, v21
    """)
    A(f"""
    v_bfe_u32 v21, v20, 1, 3
    v_xor_b32 v21, v21, v17
    v_lshlrev_b32 v22, 7, v20
    v_lshl_add_u32 v22, v21, 4, v22
    s_lshl_b32 s31, s3, 12
    v_add_u32 v24, s31, v22
    v_xor_b32 v25, 32, v24
    v_xor_b32 v26, 64, v24
    v_xor_b32 v27, 0x60, v24
    v_add_u32 v28, 0x10000, v24
    v_add_u32 v29, 0x10000, v25
    v_add_u32 v30, 0x10000, v26
    v_add_u32 v31, 0x10000, v27
    """)
    A(f"""
    v_lshl_add_u32 v23, v17, 3, v14
    v_lshlrev_b32 v23, 7, v23
    v_lshl_add_u32 v23, v16, 5, v23
    v_and_b32 v21, 1, v15
    v_lshl_add_u32 v23, v21, 4, v23
    v_lshrrev_b32 v21, 1, v15
    v_lshl_add_u32 v23, v21, 3, v23
    v_lshrrev_b32 v21, 1, v14
    v_lshl_add_u32 v8, v21, 6, v23
    v_add_u32 v8, {TB}, v8
    v_xor_b32 v9, 64, v8
    """)
    AC0 = 32
    FB = [64, 76, 88]
    XR = 100
    XF = 116
    for i in range(32):
        A(f"v_mov_b32 v{AC0+i}, 0")
    A(f"""
    s_lshl_b32 s31, s27, 8
    s_add_u32 s31, s31, s30
    s_lshl_b32 s31, s31, 10
    s_add_u32 s32, s31, {HIN_OFF:#x}
    s_add_u32 s34, s31, {HF_OFF:#x}
    s_lshl_b32 s36, s30, 12
    s_lshl_b32 s31, s27, 9
    s_add_u32 s36, s36, s31
    s_add_u32 s37, s36, {ST2_OFF:#x}
    s_add_u32 s36, s36, {ST_OFF:#x}
    s_lshl_b32 s31, s3, 9
    s_add_u32 s31, s31, {MISC + 64}
    v_lshlrev_b32 v5, 3, v0
    v_add_u32 v5, s31, v5
    v_mov_b32 v6, {MISC}
    s_waitcnt lgkmcnt(0)
    """)
    srd(A, 56, 18, 19, WS_SIZE)
    if OPT.get("prewrite", 1):
        A(f"""
        s_mov_b32 exec_hi, 0
        buffer_store_dwordx4 {vr(AC0)}, v2, s[56:59], s36 offen
        s_mov_b32 exec_hi, -1
        """)
    ST = ST0.fork()
    ST.stamp("issued")

    def g_reads(kk):
        c, s_ = kk // 4, kk % 4
        st = c % D
        b = FB[kk % 3]
        off = st * RST
        a = 24 + s_
        if off >= 65536:
            off -= 65536
            a += 4
        L = [f"ds_read_b128 {vr(b)}, v{a} offset:{off}"]
        for ct in range(2):
            for j in range(2):
                L.append(f"ds_read_b64_tr_b16 {vr(b+4+4*ct+2*j, 2)}, v{8+ct} offset:{st*TST + s_*2048 + j*512}")
        return L

    def g_mfmas(kk):
        b = FB[kk % 3]
        return [f"v_mfma_f32_32x32x16_bf16 {vr(AC0+16*ct,16)}, {vr(b+4+4*ct)}, {vr(b)}, {vr(AC0+16*ct,16)}" for ct in range(2)]

    def g_xread():
        for s_ in range(4):
            A(f"ds_read_b128 {vr(XR+4*s_)}, v{28+s_} offset:{XB - 65536}")
        A("ds_read_b64 v[22:23], v6")

    def g_xunpack():
        for d in range(16):
            A(f"v_lshlrev_b32 v{XF+2*d}, 16, v{XR+d}\nv_and_b32 v{XF+2*d+1}, 0xffff0000, v{XR+d}")
    def g_epoch():
        A(f"""
        s_cmp_lg_u32 s3, 0
        s_cbranch_scc1 K1G_noep
        s_waitcnt vmcnt(0)
        v_or_b32 v150, v148, v149
        v_cmp_eq_u32 vcc, 0, v150
        v_mov_b32 v150, s70
        v_mov_b32 v151, s71
        v_cndmask_b32 v148, v148, v150, vcc
        v_cndmask_b32 v149, v149, v151, vcc
        s_mov_b64 exec, 1
        ds_write_b64 v6, v[148:149]
        s_mov_b64 exec, -1
        """)
        A.label("K1G_noep")
    kstep_loop(g_reads, g_mfmas, 5, ST, OPT.get("gst", (0, 3)), {22: g_epoch, 29: g_xread})
    ST.stamp("loop_end")
    g_xunpack()
    V = XF
    for i in range(16):
        A(f"v_pk_add_f32 v[{V+2*i}:{V+2*i+1}], v[{V+2*i}:{V+2*i+1}], v[{AC0+2*i}:{AC0+2*i+1}]")
    T = 64
    for i in range(8):
        A(f"v_pk_add_f32 v[{T+2*i}:{T+2*i+1}], v[{V+4*i}:{V+4*i+1}], v[{V+4*i+2}:{V+4*i+3}]")
    for n in (4, 2, 1):
        for i in range(n):
            A(f"v_pk_add_f32 v[{T+2*i}:{T+2*i+1}], v[{T+2*i}:{T+2*i+1}], v[{T+2*(i+n)}:{T+2*(i+n)+1}]")
    A(f"""
    v_add_f32 v{T}, v{T}, v{T+1}
    v_mov_b32 v{T+1}, v{T}
    s_nop 1
    v_permlane32_swap_b32 v{T}, v{T+1}
    s_nop 1
    v_add_f32 v20, v{T}, v{T+1}
    v_mul_f32 v{T+2}, 0xbc800000, v20
    v_mul_f32 v{T+3}, 0xbc800000, v20
    """)
    for i in range(16):
        A(f"v_pk_add_f32 v[{AC0+2*i}:{AC0+2*i+1}], v[{V+2*i}:{V+2*i+1}], v[{T+2}:{T+3}]")
    A(f"v_pk_mul_f32 v[{T+4}:{T+5}], v[{AC0}:{AC0+1}], v[{AC0}:{AC0+1}]")
    A(f"v_pk_mul_f32 v[{T+6}:{T+7}], v[{AC0+2}:{AC0+3}], v[{AC0+2}:{AC0+3}]")
    for i in range(2, 16):
        t = T + 4 + 2 * (i % 2)
        A(f"v_pk_fma_f32 v[{t}:{t+1}], v[{AC0+2*i}:{AC0+2*i+1}], v[{AC0+2*i}:{AC0+2*i+1}], v[{t}:{t+1}]")
    A(f"""
    v_pk_add_f32 v[{T+4}:{T+5}], v[{T+4}:{T+5}], v[{T+6}:{T+7}]
    v_add_f32 v{T}, v{T+4}, v{T+5}
    v_mov_b32 v{T+1}, v{T}
    s_nop 1
    v_permlane32_swap_b32 v{T}, v{T+1}
    s_nop 1
    v_add_f32 v21, v{T}, v{T+1}
    s_mov_b32 exec_hi, 0
    buffer_store_dwordx4 v[20:23], v2, s[56:59], s36 offen
    buffer_store_dwordx4 v[20:23], v2, s[56:59], s37 offen sc1
    s_mov_b32 exec_hi, -1
    """)
    ST.stamp("stats")
    for d in range(16):
        A(f"v_cvt_pk_bf16_f32 v{T+d}, v{V+2*d}, v{V+2*d+1}")
    def hin_st():
        for f in range(4):
            A(f"s_add_u32 s31, s32, {f*0x10000}\nbuffer_store_dwordx4 {vr(T+4*f)}, v2, s[56:59], s31 offen{SF}")
    if not OPT.get("hinlate", 0):
        hin_st()
    A("s_barrier")
    ST.stamp("got")
    A("ds_read_b64 v[80:81], v5")
    if OPT.get("hinlate", 0):
        hin_st()
    A("""
    s_waitcnt lgkmcnt(0)
    v_mul_f32 v82, v80, v81
    v_mul_f32 v84, 0xbfb8aa3b, v81
    v_mul_f32 v85, 0xbfb8aa3b, v81
    v_mul_f32 v86, 0x3fb8aa3b, v82
    v_mul_f32 v87, 0x3fb8aa3b, v82
    v_sub_f32 v88, 0, v82
    v_sub_f32 v89, 0, v82
    v_mov_b32 v80, v81
    v_mov_b32 v90, 1.0
    v_mov_b32 v91, 1.0
    """)
    E = AC0
    for f in range(4):
        r = range(4 * f, 4 * f + 4)
        for i in r:
            A(f"v_pk_fma_f32 v[{E+2*i}:{E+2*i+1}], v[{V+2*i}:{V+2*i+1}], v[84:85], v[86:87]")
        for i in range(8 * f, 8 * f + 8):
            A(f"v_exp_f32 v{E+i}, v{E+i}")
        for i in r:
            A(f"v_pk_fma_f32 v[{V+2*i}:{V+2*i+1}], v[{V+2*i}:{V+2*i+1}], v[80:81], v[88:89]")
        for i in r:
            A(f"v_pk_add_f32 v[{E+2*i}:{E+2*i+1}], v[{E+2*i}:{E+2*i+1}], v[90:91]")
        for i in range(8 * f, 8 * f + 8):
            A(f"v_rcp_f32 v{E+i}, v{E+i}")
        A("s_nop 0")
        for i in r:
            A(f"v_pk_mul_f32 v[{V+2*i}:{V+2*i+1}], v[{V+2*i}:{V+2*i+1}], v[{E+2*i}:{E+2*i+1}]")
        for i in r:
            A(f"v_cvt_pk_bf16_f32 v{XR+i}, v{V+2*i}, v{V+2*i+1}")
        A(f"s_add_u32 s31, s34, {f*0x10000}\nbuffer_store_dwordx4 {vr(XR+4*f)}, v2, s[56:59], s31 offen{SF}")
    ST.stamp("stored")
    ST.flush(56, 3, 64)
    A("s_endpgm")

    A.label("K1_FZ")
    A("""
    s_lshl_b32 s26, s24, 4
    s_add_u32 s26, s26, s25
    s_sub_u32 s26, s26, 16
    s_cmp_ge_u32 s26, 120
    s_cbranch_scc1 K1_Z
    s_cmp_ge_u32 s26, 116
    s_cbranch_scc1 K1_end
    """)
    D = 4
    RST, TST = 20480, 16384
    TB = D * RST
    A("""
    s_and_b32 s27, s26, 3
    s_lshr_b32 s26, s26, 2
    s_mul_i32 s30, s26, 160
    s_min_u32 s30, s30, 4448
    s_cmp_lt_u32 s3, 4
    s_cbranch_scc1 K1F_comp
    """)
    A(f"""
    s_sub_u32 s28, s3, 4
    s_mul_i32 s31, s28, 80
    s_add_u32 s40, s30, s31
    s_lshl_b32 s40, s40, 10
    s_mul_i32 s41, s28, 10240
    v_xor_b32 v19, v14, v12
    v_lshlrev_b32 v6, 10, v12
    v_lshl_add_u32 v6, v19, 6, v6
    v_lshl_add_u32 v6, v15, 4, v6
    s_lshl_b32 s44, s28, 15
    s_lshl_b32 s31, s27, 8
    s_add_u32 s44, s44, s31
    s_lshl_b32 s45, s28, 13
    s_add_u32 s45, s45, {TB}
    s_add_u32 s46, s26, s27
    s_lshl_b32 s46, s46, 1
    s_waitcnt lgkmcnt(0)
    """)
    if not OPT.get("rotF", 1):
        A("s_mov_b32 s46, 0")
    srd(A, 48, 10, 11, 0x80000)
    srd(A, 52, 12, 13, 4718592)
    q = VmQ(A)

    def f_dma_list(c):
        st = c % D
        L = []
        for i in range(10):
            pre = f"""
            s_add_u32 s42, s46, {c}
            s_and_b32 s42, s42, 7
            s_lshl_b32 s43, s42, 16
            s_lshl_b32 s42, s42, 7
            s_add_u32 s43, s43, s44
            s_add_u32 s42, s42, s40
            """ if i == 0 else ""
            if i < 8:
                L.append((pre + f"s_add_u32 m0, s45, {st*TST + i*1024}\ns_add_u32 s31, s43, {i*4096}",
                          "buffer_load_dwordx4 v6, s[48:51], s31 offen lds", ("T", c, i)))
            L.append((f"s_add_u32 m0, s41, {st*RST + i*1024}\ns_add_u32 s31, s42, {i*8192}",
                      f"buffer_load_dwordx4 v{3 + i % 2}, s[52:55], s31 offen{nt} lds", ("R", c, i)))
        return L
    loader_loop(q, D, f_dma_list, lambda n: ("R", n, 9), None, None, OPT.get("fpro", 1))
    A("s_endpgm")

    A.label("K1F_comp")
    FT = OPT.get("ftouch", 0)
    A(f"""
    s_waitcnt lgkmcnt(0)
    s_and_b32 s28, s3, 1
    s_cmp_eq_u32 s28, 0
    s_cselect_b32 s60, s12, s10
    s_cselect_b32 s61, s13, s11
    s_mov_b32 s62, 0x80000
    s_cselect_b32 s62, 4718592, s62
    s_mov_b32 s63, 0x20000
    s_mov_b32 s65, 0x10000
    s_cselect_b32 s65, 0x80, s65
    s_mov_b32 s66, -1
    s_cselect_b32 s67, 0xff, 0
    s_mul_i32 s31, s27, 40
    s_add_u32 s31, s31, s30
    s_lshl_b32 s31, s31, 10
    s_and_b32 s33, s26, 3
    s_lshl_b32 s33, s33, 14
    s_lshl_b32 s34, s27, 8
    s_add_u32 s33, s33, s34
    s_cmp_eq_u32 s28, 0
    s_cselect_b32 s64, s31, s33
    v_lshlrev_b32 v7, 10, v0
    v_lshrrev_b32 v5, 1, v0
    v_lshlrev_b32 v5, 10, v5
    v_and_b32 v8, 1, v0
    v_lshl_add_u32 v5, v8, 7, v5
    s_cselect_b64 vcc, -1, 0
    s_lshr_b32 s31, s3, 1
    s_mul_i32 s31, s31, s65
    s_add_u32 s64, s64, s31
    v_cndmask_b32 v7, v5, v7, vcc
    """)

    def f_touch(c0s):
        if not FT:
            return
        A("s_mov_b64 exec, s[66:67]")
        for c in c0s:
            A(f"s_mul_i32 s31, s65, {c}\ns_add_u32 s31, s31, s64")
            A("buffer_load_dword v1, v7, s[60:63], s31 offen")
        A("s_mov_b64 exec, -1")
    f_touch(OPT.get("ft0", (1, 3)))
    A(f"""
    v_and_b32 v20, 0x13, v18
    v_bfe_u32 v21, v18, 2, 1
    v_lshl_add_u32 v20, v21, 3, v20
    v_bfe_u32 v21, v18, 3, 1
    v_lshl_add_u32 v20, v21, 2, v20
    v_bfe_u32 v21, v20, 1, 3
    v_xor_b32 v21, v21, v17
    v_lshlrev_b32 v22, 7, v20
    v_lshl_add_u32 v24, v21, 4, v22
    v_xor_b32 v25, 32, v24
    v_xor_b32 v26, 64, v24
    v_xor_b32 v27, 0x60, v24
    v_add_u32 v28, {2*RST}, v24
    v_add_u32 v29, {2*RST}, v25
    v_add_u32 v30, {2*RST}, v26
    v_add_u32 v31, {2*RST}, v27
    v_lshl_add_u32 v23, v17, 3, v14
    v_lshlrev_b32 v23, 8, v23
    v_lshl_add_u32 v23, v16, 5, v23
    v_lshl_add_u32 v23, v15, 3, v23
    v_xor_b32 v21, s3, v14
    v_lshl_add_u32 v9, v21, 6, v23
    v_add_u32 v9, {TB}, v9
    """)
    AC = 32
    FB = [112, 136, 160]
    for i in range(80):
        A(f"v_mov_b32 v{AC+i}, 0")
    A("""
    s_lshl_b32 s33, s27, 2
    s_add_u32 s33, s33, s3
    s_lshl_b32 s33, s33, 5
    """)
    for rt in range(5):
        A(f"""
        s_add_u32 s34, s30, {32*rt}
        s_lshr_b32 s31, s34, 9
        s_bfe_u32 s32, s34, 0x50004
        s_add_u32 s32, s32, s33
        s_mul_i32 s32, s32, 10
        s_add_u32 s32, s32, s31
        s_lshl_b32 s32, s32, 10
        s_add_u32 s{36+2*rt}, s32, {WF_OFF:#x}
        s_add_u32 s{37+2*rt}, s32, {WF_OFF + 10240:#x}
        """)
    A("s_waitcnt lgkmcnt(0)")
    srd(A, 56, 18, 19, WS_SIZE)
    ST = ST0.fork()
    ST.stamp("issued")

    def f_reads(kk):
        c, s_ = kk // 4, kk % 4
        st = c % D
        b = FB[kk % 3]
        a = 24 + s_ + (4 if st >= 2 else 0)
        L = []
        for j in range(2):
            L.append(f"ds_read_b64_tr_b16 {vr(b+20+2*j, 2)}, v9 offset:{st*TST + s_*4096 + j*1024}")
        for rt in range(5):
            L.append(f"ds_read_b128 {vr(b+4*rt)}, v{a} offset:{(st % 2)*RST + rt*4096}")
        return L

    def f_mfmas(kk):
        b = FB[kk % 3]
        return [f"v_mfma_f32_32x32x16_bf16 {vr(AC+16*rt,16)}, {vr(b+4*rt)}, {vr(b+20)}, {vr(AC+16*rt,16)}" for rt in range(5)]
    kstep_loop(f_reads, f_mfmas, 7, ST, (0, 1, 2, 4, 6), {k: (lambda v=v: f_touch(v)) for k, v in OPT.get("ftk", {0: (5,), 4: (6,)}).items()})
    ST.stamp("loop_end")
    A("s_nop 7")
    for rt in range(5):
        if rt == 0:
            A("s_cmp_eq_u32 s26, 28\ns_cbranch_scc1 K1F_skip0")
        if rt == 1:
            A.label("K1F_skip0")
        for hf in range(2):
            o = 112 + 8 * rt + 4 * hf
            for d in range(4):
                A(f"v_cvt_pk_bf16_f32 v{o+d}, v{AC+16*rt+8*hf+2*d}, v{AC+16*rt+8*hf+2*d+1}")
            A(f"buffer_store_dwordx4 {vr(o)}, v2, s[56:59], s{36+2*rt+hf} offen{SF}")
    ST.flush(56, 3, 160)
    A("s_endpgm")

    A.label("K1_Z")
    A(f"""
    s_cmp_ge_u32 s3, 4
    s_cbranch_scc1 K1_end
    s_sub_u32 s26, s26, 120
    s_lshl_b32 s26, s26, 2
    s_add_u32 s26, s26, s3
    s_lshl_b32 s29, s26, 14
    s_lshl_b32 s30, s3, 14
    v_xor_b32 v3, 64, v2
    v_xor_b32 v4, 0x80, v2
    v_xor_b32 v5, 0xc0, v2
    v_lshl_add_u32 v23, v17, 3, v14
    v_lshlrev_b32 v23, 10, v23
    v_lshl_add_u32 v23, v16, 5, v23
    v_lshl_add_u32 v23, v15, 3, v23
    v_lshl_add_u32 v24, v14, 6, v23
    v_add_u32 v24, s30, v24
    v_xor_b32 v25, 64, v24
    v_xor_b32 v26, 0x80, v24
    v_xor_b32 v27, 0xc0, v24
    s_mul_i32 s32, s26, 10240
    s_add_u32 s32, s32, {WF_OFF + 9*1024:#x}
    s_waitcnt lgkmcnt(0)
    """)
    srd(A, 48, 10, 11, 0x80000)
    srd(A, 56, 18, 19, WS_SIZE)
    for k in range(16):
        A(f"s_add_u32 m0, s30, {k*1024}\ns_add_u32 s31, s29, {k*1024}")
        A(f"buffer_load_dwordx4 v{2 + k % 4}, s[48:51], s31 offen lds")
    A("s_waitcnt vmcnt(0)")
    for g in range(4):
        for i in range(4):
            ntile = 4 * g + i
            A(f"ds_read_b64_tr_b16 v[{32+4*ntile}:{33+4*ntile}], v{24+i} offset:{g*256}")
            A(f"ds_read_b64_tr_b16 v[{34+4*ntile}:{35+4*ntile}], v{24+i} offset:{g*256 + 4096}")
        A("s_waitcnt lgkmcnt(0)")
        for i in range(4):
            ntile = 4 * g + i
            A(f"s_add_u32 s31, s32, {ntile*327680}\nbuffer_store_dwordx4 {vr(32+4*ntile)}, v2, s[56:59], s31 offen{SF}")
    A.label("K1_end")
    A("s_endpgm")


def kd(A, name, vgpr, accum, sgpr=102):
    A.raw(f""".p2align 6
.amdhsa_kernel {name}
  .amdhsa_next_free_vgpr {vgpr}
  .amdhsa_next_free_sgpr {sgpr}
  .amdhsa_accum_offset {accum}
  .amdhsa_group_segment_fixed_size 0
  .amdhsa_kernarg_size 72
  .amdhsa_user_sgpr_count 2
  .amdhsa_user_sgpr_kernarg_segment_ptr 1
  .amdhsa_system_sgpr_workgroup_id_x 1
.end_amdhsa_kernel""")


def main():
    for a in sys.argv[1:]:
        k, v = a.split("=")
        OPT[k] = eval(v)
    A = Asm()
    A.raw("; @launch kernel=k1_kernel grid=(256,1,1) block=(384,1,1) lds=147456")
    for _ in range(OPT.get("k2rep", 1)):
        A.raw("; @launch kernel=k2_kernel grid=(256,1,1) block=(%d,1,1) lds=65536" % (320 if OPT.get("hw", 0) else 256))
    A.raw('.amdgcn_target "amdgcn-amd-amdhsa--gfx950"')
    A.raw(".text")
    gen_k1(A)
    gen_k2(A)
    A.raw('.section .rodata,"a"')
    kd(A, "k1_kernel", 184, 184)
    kd(A, "k2_kernel", 256, 256)
    sys.stdout.write(A.text())


if __name__ == "__main__":
    main()
```

```python
import sys

HF_OFF = 0x1000
HIN_OFF = 0x300000
WF_OFF = 0x600000
ST_OFF = 0xC00000
ST2_OFF = 0xD00000
WS_SIZE = 0x1000000
OOB = 0x40000000

OPT = dict(nt_in=False, stamps=False)


class Asm:
    def __init__(self):
        self.L = []

    def __call__(self, s):
        for line in s.strip("\n").split("\n"):
            self.L.append("  " + line.strip())

    def label(self, l):
        self.L.append(l + ":")

    def raw(self, s):
        self.L.append(s)

    def text(self):
        return "\n".join(self.L) + "\n"


def vr(b, n=4):
    if b >= 256:
        b -= 256
        return "a[%d:%d]" % (b, b + n - 1) if n > 1 else "a%d" % b
    return "v[%d:%d]" % (b, b + n - 1) if n > 1 else "v%d" % b


def srd(A, d, lo, hi, size):
    A(f"s_mov_b32 s{d}, s{lo}\ns_mov_b32 s{d+1}, s{hi}\ns_mov_b32 s{d+2}, {size:#x}\ns_mov_b32 s{d+3}, 0x20000")


DBG_OFF = 0xE00000


class Stamps:
    SB = 72

    def __init__(self, A, kern):
        self.A = A
        self.kern = kern
        self.n = 0
        self.names = []

    def start(self):
        if OPT["stamps"]:
            self.A("s_memrealtime s[100:101]")
            self.stamp("start")

    def stamp(self, name):
        if OPT["stamps"]:
            assert self.n < 13
            self.A(f"s_memtime s[{self.SB+2*self.n}:{self.SB+2*self.n+1}]")
            self.n += 1
            self.names.append(name)

    def fork(self):
        o = Stamps(self.A, self.kern)
        o.n = self.n
        o.names = list(self.names)
        return o

    def flush(self, srdreg, wave_sgpr, tmpv):
        if not OPT["stamps"]:
            return
        A = self.A
        A("s_waitcnt vmcnt(0)")
        self.stamp("end")
        A("s_mov_b32 s99, s100")
        A("s_memrealtime s[100:101]")
        A("s_waitcnt lgkmcnt(0)")
        A(f"v_mov_b32 v{tmpv}, s99")
        A(f"v_mov_b32 v{tmpv+15}, s100")
        for i in range(1, 15):
            if i < self.n:
                A(f"s_sub_u32 s{self.SB+2*i}, s{self.SB+2*i}, s{self.SB}\nv_mov_b32 v{tmpv+i}, s{self.SB+2*i}")
            else:
                A(f"v_mov_b32 v{tmpv+i}, 0")
        A(f"""
        s_lshl_b32 s{self.SB}, s2, 3
        s_add_u32 s{self.SB}, s{self.SB}, s{wave_sgpr}
        s_lshl_b32 s{self.SB}, s{self.SB}, 6
        s_add_u32 s{self.SB}, s{self.SB}, {DBG_OFF + self.kern*256*8*64:#x}
        v_mov_b32 v{tmpv+16}, 0
        s_mov_b64 exec, 1
        """)
        for j in range(4):
            A(f"buffer_store_dwordx4 v[{tmpv+4*j}:{tmpv+4*j+3}], v{tmpv+16}, s[{srdreg}:{srdreg+3}], s{self.SB} offen offset:{16*j}")
        sys.stderr.write("stamps k%d: %s\n" % (self.kern, self.names))


class VmQ:
    def __init__(self, A):
        self.A = A
        self.n = 0
        self.done = 0
        self.tag = {}

    def issue(self, text, tag=None):
        self.A(text)
        self.n += 1
        if tag is not None:
            self.tag[tag] = self.n
        assert self.n - self.done <= 63, "vmcnt overflow"

    def need(self, *tags):
        idx = max(self.tag[t] for t in tags)
        if idx > self.done:
            self.A("s_waitcnt vmcnt(%d)" % (self.n - idx))
            self.done = idx
            return True
        return False

    def outstanding(self):
        return self.n - self.done


def gen_k2(A):
    NS = 2
    TR_OFF = 0
    PF = 3
    ACC = 16
    STG = [96, 176]
    A.raw(".globl k2_kernel\n.p2align 8\n.type k2_kernel,@function")
    A.label("k2_kernel")
    A("""
    s_cmp_ge_u32 s2, 256
    s_cbranch_scc1 K2_end
    s_load_dwordx2 s[4:5], s[0:1], 64
    s_load_dwordx2 s[6:7], s[0:1], 0
    s_load_dwordx2 s[20:21], s[0:1], 48
    """)
    ST = Stamps(A, 1)
    ST.start()
    A("""
    v_lshrrev_b32 v1, 6, v0
    v_and_b32 v0, 63, v0
    s_and_b32 s24, s2, 7
    v_readfirstlane_b32 s3, v1
    s_lshr_b32 s25, s2, 3
    s_and_b32 s26, s24, 1
    s_lshr_b32 s27, s24, 1
    s_and_b32 s28, s25, 7
    s_lshr_b32 s29, s25, 3
    s_lshl_b32 s27, s27, 2
    s_add_u32 s27, s27, s29
    s_lshl_b32 s26, s26, 5
    s_lshl_b32 s29, s28, 2
    s_add_u32 s26, s26, s29
    """)
    A(f"""
    v_lshlrev_b32 v2, 4, v0
    v_add_u32 v3, 0x1000, v2
    v_add_u32 v4, 0x2000, v2
    v_add_u32 v5, 0x400, v2
    v_add_u32 v7, 0x1400, v2
    s_cmp_eq_u32 s28, 0
    s_cselect_b32 s30, {OOB:#x}, 0
    s_cmp_eq_u32 s28, 7
    s_cselect_b32 s31, {OOB:#x}, 0
    v_add_u32 v6, s30, v2
    v_add_u32 v7, s31, v7
    s_lshl_b32 s32, s3, 9
    s_add_u32 s32, s32, s26
    s_lshl_b32 s32, s32, 10
    s_add_u32 s33, s32, {HIN_OFF:#x}
    s_add_u32 s32, s32, {HF_OFF - 1024:#x}
    s_lshl_b32 s34, s27, 5
    s_lshl_b32 s35, s3, 3
    s_add_u32 s34, s34, s35
    s_mul_i32 s34, s34, 10240
    s_add_u32 s34, s34, {WF_OFF:#x}
    """)
    A("""
    v_lshrrev_b32 v1, 2, v0
    v_lshlrev_b32 v1, 10, v1
    v_and_b32 v8, 3, v0
    v_lshlrev_b32 v8, 4, v8
    v_add_u32 v1, v1, v8
    s_add_u32 s36, s26, s3
    s_lshl_b32 s36, s36, 15
    s_lshl_b32 s37, s27, 6
    s_add_u32 s36, s36, s37
    s_add_u32 s37, s36, 0x4000
    s_waitcnt lgkmcnt(0)
    """)
    srd(A, 8, 4, 5, WS_SIZE)
    srd(A, 12, 6, 7, 0x200000)
    srd(A, 16, 20, 21, 0x200000)
    q = VmQ(A)
    names = ["A0", "B0", "A1", "B3", "A2", "B6", "A3", "A4", "A5", "B1", "B4", "B7", "B9", "Z0", "Z1", "Z2", "Z3", "B2", "B5", "B8"]
    roff = {n: 4 * i for i, n in enumerate(names)}

    def load_text(s, n):
        r = vr(STG[s % NS] + roff[n])
        k = int(n[1])
        if n[0] == "A":
            if k == 0:
                return f"buffer_load_dwordx4 {r}, v6, s[8:11], s32 offen"
            if k == 5:
                return f"buffer_load_dwordx4 {r}, v7, s[8:11], s32 offen"
            return f"buffer_load_dwordx4 {r}, v5, s[8:11], s32 offen offset:{(k-1)*1024}"
        if n[0] == "Z":
            return f"buffer_load_dwordx4 {r}, v2, s[8:11], s33 offen offset:{k*1024}"
        return f"buffer_load_dwordx4 {r}, v{2 + k // 4}, s[8:11], s34 offen offset:{(k % 4)*1024}"

    def adv():
        A("s_add_u32 s32, s32, 0x10000\ns_add_u32 s33, s33, 0x10000\ns_add_u32 s34, s34, 10240")

    TD = 0
    HW = OPT.get("hw", 0)
    if HW:
        A(f"""
        s_cmp_lg_u32 s3, 4
        s_cbranch_scc1 K2_main
        s_sub_u32 s32, s32, {4*8*65536}
        s_sub_u32 s33, s33, {4*8*65536}
        s_sub_u32 s34, s34, {4*8*10240}
        s_mul_i32 s38, s28, 1280
        s_add_u32 s38, s38, s34
        s_lshr_b32 s39, s25, 3
        s_lshl_b32 s39, s39, 10
        s_add_u32 s40, s39, s32
        s_add_u32 s40, s40, 1024
        s_add_u32 s41, s39, s33
        v_and_b32 v20, 31, v0
        v_lshlrev_b32 v21, 7, v20
        v_add_u32 v21, s38, v21
        v_mov_b32 v22, 10240
        v_and_b32 v23, 7, v0
        v_lshlrev_b32 v23, 7, v23
        v_add_u32 v24, s40, v23
        v_add_u32 v23, s41, v23
        v_cmp_gt_u32 vcc, 24, v20
        s_nop 1
        v_cndmask_b32 v23, v23, v24, vcc
        v_mov_b32 v24, 0x10000
        v_cmp_gt_u32 vcc, 16, v20
        s_nop 1
        v_cndmask_b32 v16, v23, v21, vcc
        v_cndmask_b32 v17, v24, v22, vcc
        v_lshrrev_b32 v20, 5, v0
        v_lshlrev_b32 v18, 3, v17
        v_mul_u32_u24 v20, v20, v18
        v_add_u32 v16, v16, v20
        v_lshl_add_u32 v19, v18, 1, v16
        s_mov_b32 exec_lo, 0xffff03ff
        s_mov_b32 exec_hi, 0xffff03ff
        """)
        hs = OPT.get("hstart", 2)
        for _ in range(hs - 1):
            A("v_add_u32 v16, v16, v17\nv_add_u32 v19, v19, v17")
        for st in range(hs, 8):
            if st > hs:
                A("s_barrier")
            A("v_add_u32 v16, v16, v17\nv_add_u32 v19, v19, v17")
            A("buffer_load_dword v20, v16, s[8:11], 0 offen\nbuffer_load_dword v21, v19, s[8:11], 0 offen")
        A("s_endpgm")
        A.label("K2_main")
    PFL = OPT.get("pfl", 20)
    names7 = ["A0", "B0", "A1", "B3", "A2", "B6", "A3", "B1", "B4", "B7", "B9", "Z0", "Z1", "B2", "B5", "B8", "A4", "A5", "Z2", "Z3"]
    EP = OPT.get("ep", 1)
    allloads = [(s_, n) for s_ in range(8) for n in (names7 if (s_ == 7 and EP) else names)]
    nxt = [0]

    def issue_next():
        t = allloads[nxt[0]]
        q.issue(load_text(*t), t)
        nxt[0] += 1
        if nxt[0] % 20 == 0 and nxt[0] < 160:
            adv()
    nt = " nt" if OPT["nt_in"] else ""
    for i in range(PFL):
        issue_next()
        if i < 20:
            for j in range(4):
                A(f"v_mov_b32 v{ACC + 4*i + j}, 0")
    for i in range(4 * min(PFL, 20), 80):
        A(f"v_mov_b32 v{ACC + i}, 0")
    A("s_nop 1")
    ST.stamp("issued")
    xf_done = False

    def epi_rows(rows):
        L = []
        for r in rows:
            E = ACC + 20 * r
            L += [f"v_permlane32_swap_b32 v{E+0}, v{E+19}",
                  f"v_add_f32 v{E+3}, v{E+3}, v{E+18}",
                  f"v_add_f32 v{E+16}, v{E+16}, v{E+1}",
                  f"v_cndmask_b32 v{E+19}, 0, v{E+19}, s[40:41]",
                  f"v_cndmask_b32 v{E+0}, 0, v{E+0}, s[42:43]",
                  f"v_add_f32 v{E+17}, v{E+17}, v{E+19}",
                  f"v_add_f32 v{E+2}, v{E+2}, v{E+0}"]
            for j in range(4):
                L.append(f"ds_write_b128 v96, v[{E+2+4*j}:{E+5+4*j}] offset:{r*16384 + j*1024}")
        return L
    for s in range(8):
        if s in (1, 2, 4, 6):
            ST.stamp("stage%d" % s)
        if HW and 1 <= s < 8 - OPT.get("hstart", 2):
            A("s_barrier")
        base = STG[s % NS]
        seq = []
        for rows in ([(0, 1), (2, 3)] if (s == 7 and EP) else [(0, 1, 2, 3)]):
            for dj in range(3):
                for r in rows:
                    for di in range(3):
                        seq.append((r, dj, "A%d" % (r + di), "B%d" % (di * 3 + dj)))
                    if dj == 1:
                        seq.append((r, dj, "Z%d" % r, "B9"))
        side = []
        if s == 7 and EP:
            A("s_lshl_b32 s38, s3, 12\nv_add_u32 v96, s38, v2\ns_mov_b32 s40, -1\ns_mov_b32 s41, 0\ns_mov_b32 s42, 0\ns_mov_b32 s43, -1")
            side = epi_rows((0, 1))
        for mi, (r, dj, an, bn) in enumerate(seq):
            if s == 7 and EP and mi > 0 and seq[mi - 1][:2] != (r, dj):
                A("s_nop 3")
            if TD and mi == 1 and s + TD < 8:
                touch()
            q.need((s, an), (s, bn))
            d = ACC + 20 * r + (4 - 2 * dj)
            if OPT.get("m16"):
                dd = ACC + 20 * r + 8 * (mi % 2)
                A(f"v_mfma_f32_16x16x32_bf16 {vr(dd,4)}, {vr(base+roff[an])}, {vr(base+roff[bn])}, {vr(dd,4)}")
                A(f"v_mfma_f32_16x16x32_bf16 {vr(dd+4,4)}, {vr(base+roff[bn])}, {vr(base+roff[an])}, {vr(dd+4,4)}")
            elif not OPT.get("nomfma"):
                A(f"v_mfma_f32_32x32x16_bf16 {vr(d,16)}, {vr(base+roff[an])}, {vr(base+roff[bn])}, {vr(d,16)}")
            tgt = min(160, PFL + s * 20 + (mi + 1) // 2)
            k = 0
            while nxt[0] < tgt:
                assert allloads[nxt[0]][0] < s + NS, "register ring overrun"
                issue_next()
                k += 1
            if nxt[0] == 160 and not xf_done:
                q.issue(f"buffer_load_dwordx4 v[8:11], v1, s[12:15], s36 offen{nt}", "xf0")
                q.issue(f"buffer_load_dwordx4 v[12:15], v1, s[12:15], s37 offen{nt}", "xf1")
                xf_done = True
                k += 1
            if s == 7 and EP and mi >= 26 and side:
                for _ in range(2):
                    if side:
                        A(side.pop(0))
                k += 1
            if k == 0:
                A("s_nop 0")
        for t in side:
            A(t)
    ST.stamp("loop_end")
    if EP:
        A("s_nop 7")
        for t in epi_rows((2,)):
            A(t)
        for t in epi_rows((3,)):
            A(t)
    else:
        A("s_nop 15")
        A("s_lshl_b32 s38, s3, 12\nv_add_u32 v96, s38, v2\ns_mov_b32 s40, -1\ns_mov_b32 s41, 0\ns_mov_b32 s42, 0\ns_mov_b32 s43, -1")
        for t in epi_rows((0, 1, 2, 3)):
            A(t)
    A("s_lshl_b32 s38, s3, 14\nv_add_u32 v97, s38, v2")
    A("""
    v_and_b32 v98, 31, v0
    v_lshlrev_b32 v98, 2, v98
    v_lshrrev_b32 v99, 5, v0
    v_lshlrev_b32 v99, 11, v99
    v_add3_u32 v98, v98, v99, s38
    v_lshrrev_b32 v99, 2, v0
    v_lshlrev_b32 v99, 7, v99
    v_and_b32 v164, 3, v0
    v_lshlrev_b32 v164, 5, v164
    v_add3_u32 v99, v99, v164, s38
    """)
    A("s_waitcnt lgkmcnt(0)\ns_barrier")
    ST.stamp("bar")
    for j in range(4):
        for w in range(4):
            A(f"ds_read_b128 v[{100+16*w+4*j}:{103+16*w+4*j}], v97 offset:{w*4096 + j*1024}")
    q.need("xf0", "xf1")
    for it in range(2):
        for d in range(4):
            x = 8 + 4 * it + d
            A(f"v_lshlrev_b32 v{180+8*it+2*d}, 16, v{x}\nv_and_b32 v{181+8*it+2*d}, 0xffff0000, v{x}")

    def pk(d, a, b):
        A(f"v_pk_add_f32 v[{d}:{d+1}], v[{a}:{a+1}], v[{b}:{b+1}]")
    for j in range(4):
        A(f"s_waitcnt lgkmcnt({12 - 4*j if j < 3 else 0})" if j == 0 else f"s_waitcnt lgkmcnt({min(15, 12 - 4*j + 4*j)})")
        for h in range(2):
            o = 4 * j + 2 * h
            pk(100 + o, 100 + o, 116 + o)
            pk(132 + o, 132 + o, 148 + o)
        for h in range(2):
            o = 4 * j + 2 * h
            pk(100 + o, 100 + o, 132 + o)
        for i in range(4 * j, 4 * j + 4):
            p, qq = i % 2, i // 2
            A(f"ds_write_b32 v98, v{100+i} offset:{TR_OFF + (8*p + qq)*128}")
    for it in range(2):
        A(f"ds_read_b128 v[{116+8*it}:{119+8*it}], v99 offset:{TR_OFF + it*2048}")
        A(f"ds_read_b128 v[{120+8*it}:{123+8*it}], v99 offset:{TR_OFF + it*2048+16}")
    OF = OPT.get("of", "")
    for it in range(2):
        A(f"s_waitcnt lgkmcnt({2 - 2*it})")
        for d in range(4):
            pk(116 + 8 * it + 2 * d, 116 + 8 * it + 2 * d, 180 + 8 * it + 2 * d)
        for d in range(4):
            A(f"v_cvt_pk_bf16_f32 v{148+4*it+d}, v{116+8*it+2*d}, v{117+8*it+2*d}")
        A(f"buffer_store_dwordx4 v[{148+4*it}:{151+4*it}], v1, s[16:19], s{36+it} offen{OF}")
    ST.flush(8, 3, 100)
    if OPT.get("dbgout"):
        A(f"""
        s_cmp_lg_u32 s2, 0
        s_cbranch_scc1 K2_end
        s_cmp_lg_u32 s3, 0
        s_cbranch_scc1 K2_end
        s_load_dwordx2 s[40:41], s[0:1], 56
        v_mov_b32 v130, 0
        s_mov_b32 s44, {DBG_OFF:#x}
        s_mov_b32 s45, {DBG_OFF + 128*8*64:#x}
        buffer_load_dword v120, v130, s[8:11], s44 offen
        buffer_load_dword v121, v130, s[8:11], s44 offen offset:60
        buffer_load_dword v122, v130, s[8:11], s45 offen
        buffer_load_dword v123, v130, s[8:11], s45 offen offset:60
        buffer_load_dword v124, v130, s[8:11], s44 offen offset:32
        buffer_load_dword v125, v130, s[8:11], s45 offen offset:32
        buffer_load_dword v126, v130, s[8:11], s44 offen offset:8
        buffer_load_dword v127, v130, s[8:11], s45 offen offset:8
        s_waitcnt vmcnt(0) lgkmcnt(0)
        """)
        srd(A, 52, 40, 41, 256)
        A("""
        v_sub_u32 v121, v121, v120
        v_sub_u32 v122, v122, v120
        v_sub_u32 v123, v123, v120
        v_sub_u32 v128, v100, v120
        v_sub_u32 v129, v115, v120
        v_mov_b32 v120, v108
        v_mov_b32 v131, v101
        s_nop 1
        buffer_store_dwordx4 v[120:123], v130, s[52:55], 0 offen
        buffer_store_dwordx4 v[124:127], v130, s[52:55], 0 offen offset:16
        buffer_store_dwordx4 v[128:131], v130, s[52:55], 0 offen offset:32
        """)
    if OPT.get("leak"):
        A(f"""
        s_cmp_lg_u32 s2, 0
        s_cbranch_scc1 K2_end
        s_cmp_lg_u32 s3, 0
        s_cbranch_scc1 K2_end
        v_mov_b32 v130, 0
        s_mov_b32 s44, {DBG_OFF:#x}
        buffer_load_dword v120, v130, s[8:11], s44 offen
        buffer_load_dword v121, v130, s[8:11], s44 offen offset:60
        s_waitcnt vmcnt(0)
        v_readfirstlane_b32 s46, v120
        v_readfirstlane_b32 s47, v121
        s_nop 3
        """)
        if OPT["leak"] == 1:
            A("s_sub_u32 s48, s99, s46")
        elif OPT["leak"] == 2:
            A("s_sub_u32 s48, s100, s99")
        elif OPT["leak"] == 3:
            A("s_sub_u32 s48, s47, s46")
        else:
            A("s_mov_b32 s48, 0")
        A("""
        s_min_u32 s48, s48, 10000
        s_lshl_b32 s48, s48, 2
        s_add_u32 s48, s48, s100
        """)
        A.label("K2_spin")
        A("""
        s_memrealtime s[50:51]
        s_waitcnt lgkmcnt(0)
        s_sub_u32 s49, s50, s48
        s_cmp_lt_i32 s49, 0
        s_cbranch_scc1 K2_spin
        """)
    A.label("K2_end")
    A("s_endpgm")


def gen_k1(A):
    nt = " nt" if OPT["nt_in"] else ""
    SF = OPT.get("sf", " sc1")
    A.raw(".globl k1_kernel\n.p2align 8\n.type k1_kernel,@function")
    A.label("k1_kernel")
    A("""
    s_cmp_ge_u32 s2, 256
    s_cbranch_scc1 K1_end
    s_load_dwordx4 s[4:7], s[0:1], 8
    s_load_dwordx4 s[8:11], s[0:1], 24
    s_load_dwordx2 s[12:13], s[0:1], 40
    s_load_dwordx4 s[16:19], s[0:1], 56
    """)
    ST0 = Stamps(A, 0)
    ST0.start()
    A("""
    v_lshrrev_b32 v1, 6, v0
    v_and_b32 v0, 63, v0
    s_and_b32 s24, s2, 7
    v_readfirstlane_b32 s3, v1
    s_lshr_b32 s25, s2, 3
    """)
    A("""
    v_lshlrev_b32 v2, 4, v0
    v_lshrrev_b32 v10, 3, v0
    v_and_b32 v11, 7, v0
    v_lshrrev_b32 v12, 4, v0
    v_xor_b32 v13, v11, v12
    v_lshlrev_b32 v3, 10, v10
    v_lshl_add_u32 v3, v13, 4, v3
    v_xor_b32 v4, 64, v3
    v_bfe_u32 v14, v0, 2, 2
    v_and_b32 v15, 3, v0
    v_and_b32 v16, 1, v12
    v_lshrrev_b32 v17, 5, v0
    v_and_b32 v18, 31, v0
    s_cmp_ge_u32 s25, 16
    s_cbranch_scc1 K1_FZ
    """)

    def loader_loop(q, D, dma_list, last_tag, extra_after=None, pre_barrier=None, npro=None):
        nxt = [0]

        def issue_to(lim):
            while nxt[0] <= lim and nxt[0] < 8:
                c = nxt[0]
                for e in dma_list(c):
                    A(e[0])
                    q.issue(e[1], e[2])
                if extra_after and c in extra_after:
                    extra_after[c]()
                nxt[0] += 1
        issue_to((D - 2 if npro is None else npro) - 1)
        for n in range(8):
            q.need(last_tag(n))
            if pre_barrier and n in pre_barrier:
                pre_barrier[n]()
            A("s_barrier")
            issue_to(n - 2 + D)

    def kstep_loop(reads, mfmas, nrd, ST, stamp_at, fill=None):
        def bar(kk):
            if kk % 4 == 0:
                A("s_barrier")
                if kk // 4 in stamp_at:
                    ST.stamp("bar%d" % (kk // 4))
        for kk in (0, 1):
            bar(kk)
            for r in reads(kk):
                A(r)
        for kk in range(32):
            A(f"s_waitcnt lgkmcnt({nrd if kk + 1 < 32 else 0})")
            rl = reads(kk + 2) if kk + 2 < 32 else []
            ml = mfmas(kk)
            per = -(-len(rl) // len(ml)) if rl else 0
            for i, m in enumerate(ml):
                A(m)
                if i == 0 and rl:
                    bar(kk + 2)
                for r in rl[i * per:(i + 1) * per]:
                    A(r)
            if fill and kk in fill:
                fill[kk]()

    D = 5
    RST, TST = 16384, 8192
    TB = D * RST
    XB = TB + D * TST
    MISC = XB + 16384
    A("""
    s_lshl_b32 s26, s24, 1
    s_lshr_b32 s27, s25, 3
    s_add_u32 s26, s26, s27
    s_and_b32 s27, s25, 7
    s_cmp_lt_u32 s3, 4
    s_cbranch_scc1 K1G_comp
    """)
    A(f"""
    s_sub_u32 s28, s3, 4
    s_lshl_b32 s40, s26, 17
    s_lshl_b32 s31, s28, 16
    s_add_u32 s40, s40, s31
    s_lshl_b32 s41, s28, 13
    v_lshrrev_b32 v19, 2, v11
    v_xor_b32 v19, v19, v16
    v_lshlrev_b32 v6, 10, v10
    v_lshl_add_u32 v6, v19, 6, v6
    v_lshl_add_u32 v6, v15, 4, v6
    s_lshl_b32 s44, s28, 15
    s_lshl_b32 s31, s27, 7
    s_add_u32 s44, s44, s31
    s_add_u32 s47, s40, s31
    s_lshl_b32 s45, s28, 12
    s_add_u32 s45, s45, {TB}
    s_and_b32 s46, s26, 1
    s_lshl_b32 s46, s46, 2
    s_add_u32 s46, s46, s27
    s_waitcnt lgkmcnt(0)
    """)
    srd(A, 48, 8, 9, 0x80000)
    srd(A, 52, 6, 7, 0x200000)
    q = VmQ(A)

    def g_dma_list(c):
        st = c % D
        L = []
        for i in range(4):
            pre = f"""
            s_add_u32 s42, s46, {c}
            s_and_b32 s42, s42, 7
            s_lshl_b32 s43, s42, 16
            s_lshl_b32 s42, s42, 7
            s_add_u32 s43, s43, s44
            s_add_u32 s42, s42, s40
            """ if i == 0 else ""
            L.append((pre + f"s_add_u32 m0, s45, {st*TST + i*1024}\ns_add_u32 s31, s43, {i*8192}",
                      "buffer_load_dwordx4 v6, s[48:51], s31 offen lds", ("T", c, i)))
            for g in (2 * i, 2 * i + 1):
                L.append((f"s_add_u32 m0, s41, {st*RST + g*1024}\ns_add_u32 s31, s42, {g*8192}",
                          f"buffer_load_dwordx4 v{3 + g % 2}, s[52:55], s31 offen{nt} lds", ("R", c, g)))
        return L

    def g_after0():
        srd(A, 56, 18, 19, WS_SIZE)
        srd(A, 60, 4, 5, 0x200000)
        A(f"""
        s_lshl_b32 s36, s26, 2
        s_lshl_b32 s31, s28, 1
        s_add_u32 s36, s36, s31
        s_lshl_b32 s36, s36, 12
        s_add_u32 s69, s36, {ST2_OFF:#x}
        s_add_u32 s36, s36, {ST_OFF:#x}
        v_lshlrev_b32 v5, 7, v0
        """)

    def g_after6():
        for g in range(8):
            A(f"s_add_u32 m0, s41, {XB + g*1024}\ns_add_u32 s31, s47, {g*8192}")
            q.issue(f"buffer_load_dwordx4 v{3 + g % 2}, s[60:63], s31 offen{nt} lds", ("X", g))

    loader_loop(q, D, g_dma_list, lambda n: ("R", n, 7), {0: g_after0, 6: g_after6}, None, OPT.get("gpro", 3))
    A(f"s_mov_b32 s38, 0\nv_mov_b32 v8, {MISC}\nds_read_b64 v[26:27], v8\ns_waitcnt lgkmcnt(0)")
    A.label("K1G_poll")
    FP = OPT.get("fastpolls", 40)
    PFLG = OPT.get("pflg", " sc1")
    A(f"s_cmp_ge_u32 s38, {FP}\ns_cbranch_scc1 K1G_pollB")
    for i in range(8):
        A(f"buffer_load_dwordx4 {vr(32+4*i)}, v{2 if i < 4 else 7}, s[56:59], s36 offen offset:{(i % 4)*1024}{PFLG}" if i != 4 else
          f"v_add_u32 v7, 0x1000, v2\nbuffer_load_dwordx4 {vr(32+4*i)}, v7, s[56:59], s36 offen{PFLG}")
    A("s_branch K1G_pchk")
    A.label("K1G_pollB")
    A("s_sleep 1\nv_add_u32 v7, 0x1000, v2")
    for i in range(8):
        A(f"buffer_load_dwordx4 {vr(32+4*i)}, v{2 if i < 4 else 7}, s[56:59], s69 offen offset:{(i % 4)*1024} sc1")
    A.label("K1G_pchk")
    A("s_waitcnt vmcnt(0)")
    for i in range(8):
        A(f"v_xor_b32 v{64+2*i}, v{34+4*i}, v26\nv_xor_b32 v{65+2*i}, v{35+4*i}, v27")
    A("""
    v_or3_b32 v64, v64, v65, v66
    v_or3_b32 v67, v67, v68, v69
    v_or3_b32 v70, v70, v71, v72
    v_or3_b32 v73, v73, v74, v75
    v_or3_b32 v76, v76, v77, v78
    v_or3_b32 v64, v64, v67, v70
    v_or3_b32 v73, v73, v76, v79
    v_or_b32 v64, v64, v73
    v_cmp_ne_u32 vcc, 0, v64
    s_nop 3
    s_cmp_eq_u64 vcc, 0
    s_cbranch_scc1 K1G_got
    s_add_u32 s38, s38, 1
    s_cmp_lt_u32 s38, 0x40000
    s_cbranch_scc1 K1G_poll
    """)
    A.label("K1G_got")
    A(f"""
    s_mov_b32 s68, 0x3c800000
    s_lshl_b32 s31, s28, 10
    s_add_u32 s31, s31, {MISC + 64}
    v_lshlrev_b32 v29, 3, v0
    v_add_u32 v29, s31, v29
    """)
    for t in range(2):
        b = 32 + 16 * t
        r = 80 + 8 * t
        A(f"""
        v_add_f32 v{r}, v{b}, v{b+4}
        v_add_f32 v{r+1}, v{b+8}, v{b+12}
        v_add_f32 v{r+2}, v{b+1}, v{b+5}
        v_add_f32 v{r+3}, v{b+9}, v{b+13}
        v_add_f32 v{r}, v{r}, v{r+1}
        v_add_f32 v{r+2}, v{r+2}, v{r+3}
        v_mov_b32 v{r+1}, v{r}
        """)
    A("s_nop 1\nv_permlane32_swap_b32 v80, v81\nv_permlane32_swap_b32 v88, v89\ns_nop 1")
    for t in range(2):
        b = 32 + 16 * t
        r = 80 + 8 * t
        A(f"v_add_f32 v{r}, v{r}, v{r+1}\nv_mul_f32 v{r}, 0x3b000000, v{r}")
        for i in range(4):
            A(f"v_fma_f32 v{r+4+i}, v{b+4*i}, s68, -v{r}")
        A(f"v_mul_f32 v{r+4}, v{r+4}, v{r+4}")
        for i in range(1, 4):
            A(f"v_fmac_f32 v{r+4}, v{r+4+i}, v{r+4+i}")
        A(f"v_fmac_f32 v{r+2}, 0x42800000, v{r+4}\nv_mov_b32 v{r+3}, v{r+2}")
    A("s_nop 1\nv_permlane32_swap_b32 v82, v83\nv_permlane32_swap_b32 v90, v91\ns_nop 1")
    for t in range(2):
        r = 80 + 8 * t
        A(f"""
        v_add_f32 v{r+2}, v{r+2}, v{r+3}
        v_mov_b32 v{r+3}, 0x3727c5ac
        v_fmac_f32 v{r+3}, 0x3b000000, v{r+2}
        v_rsq_f32 v{r+1}, v{r+3}
        """)
    A("""
    s_nop 0
    ds_write_b64 v29, v[80:81]
    ds_write_b64 v29, v[88:89] offset:512
    s_waitcnt lgkmcnt(0)
    s_barrier
    s_endpgm
    """)

    A.label("K1G_comp")
    A("""
    s_lshl_b32 s30, s26, 2
    s_add_u32 s30, s30, s3
    s_memrealtime s[70:71]
    s_and_b32 s46, s26, 1
    s_lshl_b32 s46, s46, 2
    s_add_u32 s46, s46, s27
    s_add_u32 s46, s46, s3
    s_add_u32 s46, s46, 1
    s_and_b32 s46, s46, 7
    s_lshl_b32 s46, s46, 16
    s_lshl_b32 s31, s27, 7
    s_add_u32 s46, s46, s31
    v_lshlrev_b32 v9, 10, v0
    s_waitcnt lgkmcnt(0)
    """)
    srd(A, 48, 8, 9, 0x80000)
    srd(A, 64, 16, 17, 256)
    if OPT.get("gtouch", 0):
        A("buffer_load_dword v1, v9, s[48:51], s46 offen")
    A("""
    s_cmp_lg_u32 s3, 0
    s_cbranch_scc1 K1G_noat
    v_mov_b32 v148, s70
    v_mov_b32 v149, s71
    v_mov_b32 v150, 0
    v_mov_b32 v151, 0
    s_lshl_b32 s31, s26, 3
    v_mov_b32 v8, s31
    s_mov_b64 exec, 1
    buffer_atomic_cmpswap_x2 v[148:151], v8, s[64:67], 0 offen sc0 sc1
    s_mov_b64 exec, -1
    """)
    A.label("K1G_noat")
    A("""
    v_bfe_u32 v20, v18, 2, 1
    v_lshlrev_b32 v20, 4, v20
    v_and_b32 v21, 1, v18
    v_lshl_add_u32 v20, v21, 3, v20
    v_lshrrev_b32 v21, 3, v18
    v_lshl_add_u32 v20, v21, 1, v20
    v_bfe_u32 v21, v18, 1, 1
    v_add_u32 v20, v20, v21
    """)
    A(f"""
    v_bfe_u32 v21, v20, 1, 3
    v_xor_b32 v21, v21, v17
    v_lshlrev_b32 v22, 7, v20
    v_lshl_add_u32 v22, v21, 4, v22
    s_lshl_b32 s31, s3, 12
    v_add_u32 v24, s31, v22
    v_xor_b32 v25, 32, v24
    v_xor_b32 v26, 64, v24
    v_xor_b32 v27, 0x60, v24
    v_add_u32 v28, 0x10000, v24
    v_add_u32 v29, 0x10000, v25
    v_add_u32 v30, 0x10000, v26
    v_add_u32 v31, 0x10000, v27
    """)
    A(f"""
    v_lshl_add_u32 v23, v17, 3, v14
    v_lshlrev_b32 v23, 7, v23
    v_lshl_add_u32 v23, v16, 5, v23
    v_and_b32 v21, 1, v15
    v_lshl_add_u32 v23, v21, 4, v23
    v_lshrrev_b32 v21, 1, v15
    v_lshl_add_u32 v23, v21, 3, v23
    v_lshrrev_b32 v21, 1, v14
    v_lshl_add_u32 v8, v21, 6, v23
    v_add_u32 v8, {TB}, v8
    v_xor_b32 v9, 64, v8
    """)
    AC0 = 32
    FB = [64, 76, 88]
    XR = 100
    XF = 116
    for i in range(32):
        A(f"v_mov_b32 v{AC0+i}, 0")
    A(f"""
    s_lshl_b32 s31, s27, 8
    s_add_u32 s31, s31, s30
    s_lshl_b32 s31, s31, 10
    s_add_u32 s32, s31, {HIN_OFF:#x}
    s_add_u32 s34, s31, {HF_OFF:#x}
    s_lshl_b32 s36, s30, 12
    s_lshl_b32 s31, s27, 9
    s_add_u32 s36, s36, s31
    s_add_u32 s37, s36, {ST2_OFF:#x}
    s_add_u32 s36, s36, {ST_OFF:#x}
    s_lshl_b32 s31, s3, 9
    s_add_u32 s31, s31, {MISC + 64}
    v_lshlrev_b32 v5, 3, v0
    v_add_u32 v5, s31, v5
    v_mov_b32 v6, {MISC}
    s_waitcnt lgkmcnt(0)
    """)
    srd(A, 56, 18, 19, WS_SIZE)
    if OPT.get("prewrite", 1):
        A(f"""
        s_mov_b32 exec_hi, 0
        buffer_store_dwordx4 {vr(AC0)}, v2, s[56:59], s36 offen
        s_mov_b32 exec_hi, -1
        """)
    ST = ST0.fork()
    ST.stamp("issued")

    def g_reads(kk):
        c, s_ = kk // 4, kk % 4
        st = c % D
        b = FB[kk % 3]
        off = st * RST
        a = 24 + s_
        if off >= 65536:
            off -= 65536
            a += 4
        L = [f"ds_read_b128 {vr(b)}, v{a} offset:{off}"]
        for ct in range(2):
            for j in range(2):
                L.append(f"ds_read_b64_tr_b16 {vr(b+4+4*ct+2*j, 2)}, v{8+ct} offset:{st*TST + s_*2048 + j*512}")
        return L

    def g_mfmas(kk):
        b = FB[kk % 3]
        return [f"v_mfma_f32_32x32x16_bf16 {vr(AC0+16*ct,16)}, {vr(b+4+4*ct)}, {vr(b)}, {vr(AC0+16*ct,16)}" for ct in range(2)]

    def g_xread():
        for s_ in range(4):
            A(f"ds_read_b128 {vr(XR+4*s_)}, v{28+s_} offset:{XB - 65536}")
        A("ds_read_b64 v[22:23], v6")

    def g_xunpack():
        for d in range(16):
            A(f"v_lshlrev_b32 v{XF+2*d}, 16, v{XR+d}\nv_and_b32 v{XF+2*d+1}, 0xffff0000, v{XR+d}")
    def g_epoch():
        A(f"""
        s_cmp_lg_u32 s3, 0
        s_cbranch_scc1 K1G_noep
        s_waitcnt vmcnt(0)
        v_or_b32 v150, v148, v149
        v_cmp_eq_u32 vcc, 0, v150
        v_mov_b32 v150, s70
        v_mov_b32 v151, s71
        v_cndmask_b32 v148, v148, v150, vcc
        v_cndmask_b32 v149, v149, v151, vcc
        s_mov_b64 exec, 1
        ds_write_b64 v6, v[148:149]
        s_mov_b64 exec, -1
        """)
        A.label("K1G_noep")
    kstep_loop(g_reads, g_mfmas, 5, ST, OPT.get("gst", (0, 3)), {22: g_epoch, 29: g_xread})
    ST.stamp("loop_end")
    g_xunpack()
    V = XF
    for i in range(16):
        A(f"v_pk_add_f32 v[{V+2*i}:{V+2*i+1}], v[{V+2*i}:{V+2*i+1}], v[{AC0+2*i}:{AC0+2*i+1}]")
    T = 64
    for i in range(8):
        A(f"v_pk_add_f32 v[{T+2*i}:{T+2*i+1}], v[{V+4*i}:{V+4*i+1}], v[{V+4*i+2}:{V+4*i+3}]")
    for n in (4, 2, 1):
        for i in range(n):
            A(f"v_pk_add_f32 v[{T+2*i}:{T+2*i+1}], v[{T+2*i}:{T+2*i+1}], v[{T+2*(i+n)}:{T+2*(i+n)+1}]")
    A(f"""
    v_add_f32 v{T}, v{T}, v{T+1}
    v_mov_b32 v{T+1}, v{T}
    s_nop 1
    v_permlane32_swap_b32 v{T}, v{T+1}
    s_nop 1
    v_add_f32 v20, v{T}, v{T+1}
    v_mul_f32 v{T+2}, 0xbc800000, v20
    v_mul_f32 v{T+3}, 0xbc800000, v20
    """)
    for i in range(16):
        A(f"v_pk_add_f32 v[{AC0+2*i}:{AC0+2*i+1}], v[{V+2*i}:{V+2*i+1}], v[{T+2}:{T+3}]")
    A(f"v_pk_mul_f32 v[{T+4}:{T+5}], v[{AC0}:{AC0+1}], v[{AC0}:{AC0+1}]")
    A(f"v_pk_mul_f32 v[{T+6}:{T+7}], v[{AC0+2}:{AC0+3}], v[{AC0+2}:{AC0+3}]")
    for i in range(2, 16):
        t = T + 4 + 2 * (i % 2)
        A(f"v_pk_fma_f32 v[{t}:{t+1}], v[{AC0+2*i}:{AC0+2*i+1}], v[{AC0+2*i}:{AC0+2*i+1}], v[{t}:{t+1}]")
    A(f"""
    v_pk_add_f32 v[{T+4}:{T+5}], v[{T+4}:{T+5}], v[{T+6}:{T+7}]
    v_add_f32 v{T}, v{T+4}, v{T+5}
    v_mov_b32 v{T+1}, v{T}
    s_nop 1
    v_permlane32_swap_b32 v{T}, v{T+1}
    s_nop 1
    v_add_f32 v21, v{T}, v{T+1}
    s_mov_b32 exec_hi, 0
    buffer_store_dwordx4 v[20:23], v2, s[56:59], s36 offen
    buffer_store_dwordx4 v[20:23], v2, s[56:59], s37 offen sc1
    s_mov_b32 exec_hi, -1
    """)
    ST.stamp("stats")
    for d in range(16):
        A(f"v_cvt_pk_bf16_f32 v{T+d}, v{V+2*d}, v{V+2*d+1}")
    def hin_st():
        for f in range(4):
            A(f"s_add_u32 s31, s32, {f*0x10000}\nbuffer_store_dwordx4 {vr(T+4*f)}, v2, s[56:59], s31 offen{SF}")
    if not OPT.get("hinlate", 0):
        hin_st()
    A("s_barrier")
    ST.stamp("got")
    A("ds_read_b64 v[80:81], v5")
    if OPT.get("hinlate", 0):
        hin_st()
    A("""
    s_waitcnt lgkmcnt(0)
    v_mul_f32 v82, v80, v81
    v_mul_f32 v84, 0xbfb8aa3b, v81
    v_mul_f32 v85, 0xbfb8aa3b, v81
    v_mul_f32 v86, 0x3fb8aa3b, v82
    v_mul_f32 v87, 0x3fb8aa3b, v82
    v_sub_f32 v88, 0, v82
    v_sub_f32 v89, 0, v82
    v_mov_b32 v80, v81
    v_mov_b32 v90, 1.0
    v_mov_b32 v91, 1.0
    """)
    E = AC0
    for f in range(4):
        r = range(4 * f, 4 * f + 4)
        for i in r:
            A(f"v_pk_fma_f32 v[{E+2*i}:{E+2*i+1}], v[{V+2*i}:{V+2*i+1}], v[84:85], v[86:87]")
        for i in range(8 * f, 8 * f + 8):
            A(f"v_exp_f32 v{E+i}, v{E+i}")
        for i in r:
            A(f"v_pk_fma_f32 v[{V+2*i}:{V+2*i+1}], v[{V+2*i}:{V+2*i+1}], v[80:81], v[88:89]")
        for i in r:
            A(f"v_pk_add_f32 v[{E+2*i}:{E+2*i+1}], v[{E+2*i}:{E+2*i+1}], v[90:91]")
        for i in range(8 * f, 8 * f + 8):
            A(f"v_rcp_f32 v{E+i}, v{E+i}")
        A("s_nop 0")
        for i in r:
            A(f"v_pk_mul_f32 v[{V+2*i}:{V+2*i+1}], v[{V+2*i}:{V+2*i+1}], v[{E+2*i}:{E+2*i+1}]")
        for i in r:
            A(f"v_cvt_pk_bf16_f32 v{XR+i}, v{V+2*i}, v{V+2*i+1}")
        A(f"s_add_u32 s31, s34, {f*0x10000}\nbuffer_store_dwordx4 {vr(XR+4*f)}, v2, s[56:59], s31 offen{SF}")
    ST.stamp("stored")
    ST.flush(56, 3, 64)
    A("s_endpgm")

    A.label("K1_FZ")
    A("""
    s_lshl_b32 s26, s24, 4
    s_add_u32 s26, s26, s25
    s_sub_u32 s26, s26, 16
    s_cmp_ge_u32 s26, 120
    s_cbranch_scc1 K1_Z
    s_cmp_ge_u32 s26, 116
    s_cbranch_scc1 K1_end
    """)
    D = 4
    RST, TST = 20480, 16384
    TB = D * RST
    A("""
    s_and_b32 s27, s26, 3
    s_lshr_b32 s26, s26, 2
    s_mul_i32 s30, s26, 160
    s_min_u32 s30, s30, 4448
    s_cmp_lt_u32 s3, 4
    s_cbranch_scc1 K1F_comp
    """)
    A(f"""
    s_sub_u32 s28, s3, 4
    s_mul_i32 s31, s28, 80
    s_add_u32 s40, s30, s31
    s_lshl_b32 s40, s40, 10
    s_mul_i32 s41, s28, 10240
    v_xor_b32 v19, v14, v12
    v_lshlrev_b32 v6, 10, v12
    v_lshl_add_u32 v6, v19, 6, v6
    v_lshl_add_u32 v6, v15, 4, v6
    s_lshl_b32 s44, s28, 15
    s_lshl_b32 s31, s27, 8
    s_add_u32 s44, s44, s31
    s_lshl_b32 s45, s28, 13
    s_add_u32 s45, s45, {TB}
    s_add_u32 s46, s26, s27
    s_lshl_b32 s46, s46, 1
    s_waitcnt lgkmcnt(0)
    """)
    if not OPT.get("rotF", 1):
        A("s_mov_b32 s46, 0")
    srd(A, 48, 10, 11, 0x80000)
    srd(A, 52, 12, 13, 4718592)
    q = VmQ(A)

    def f_dma_list(c):
        st = c % D
        L = []
        for i in range(10):
            pre = f"""
            s_add_u32 s42, s46, {c}
            s_and_b32 s42, s42, 7
            s_lshl_b32 s43, s42, 16
            s_lshl_b32 s42, s42, 7
            s_add_u32 s43, s43, s44
            s_add_u32 s42, s42, s40
            """ if i == 0 else ""
            if i < 8:
                L.append((pre + f"s_add_u32 m0, s45, {st*TST + i*1024}\ns_add_u32 s31, s43, {i*4096}",
                          "buffer_load_dwordx4 v6, s[48:51], s31 offen lds", ("T", c, i)))
            L.append((f"s_add_u32 m0, s41, {st*RST + i*1024}\ns_add_u32 s31, s42, {i*8192}",
                      f"buffer_load_dwordx4 v{3 + i % 2}, s[52:55], s31 offen{nt} lds", ("R", c, i)))
        return L
    loader_loop(q, D, f_dma_list, lambda n: ("R", n, 9), None, None, OPT.get("fpro", 1))
    A("s_endpgm")

    A.label("K1F_comp")
    FT = OPT.get("ftouch", 0)
    A(f"""
    s_waitcnt lgkmcnt(0)
    s_and_b32 s28, s3, 1
    s_cmp_eq_u32 s28, 0
    s_cselect_b32 s60, s12, s10
    s_cselect_b32 s61, s13, s11
    s_mov_b32 s62, 0x80000
    s_cselect_b32 s62, 4718592, s62
    s_mov_b32 s63, 0x20000
    s_mov_b32 s65, 0x10000
    s_cselect_b32 s65, 0x80, s65
    s_mov_b32 s66, -1
    s_cselect_b32 s67, 0xff, 0
    s_mul_i32 s31, s27, 40
    s_add_u32 s31, s31, s30
    s_lshl_b32 s31, s31, 10
    s_and_b32 s33, s26, 3
    s_lshl_b32 s33, s33, 14
    s_lshl_b32 s34, s27, 8
    s_add_u32 s33, s33, s34
    s_cmp_eq_u32 s28, 0
    s_cselect_b32 s64, s31, s33
    v_lshlrev_b32 v7, 10, v0
    v_lshrrev_b32 v5, 1, v0
    v_lshlrev_b32 v5, 10, v5
    v_and_b32 v8, 1, v0
    v_lshl_add_u32 v5, v8, 7, v5
    s_cselect_b64 vcc, -1, 0
    s_lshr_b32 s31, s3, 1
    s_mul_i32 s31, s31, s65
    s_add_u32 s64, s64, s31
    v_cndmask_b32 v7, v5, v7, vcc
    """)

    def f_touch(c0s):
        if not FT:
            return
        A("s_mov_b64 exec, s[66:67]")
        for c in c0s:
            A(f"s_mul_i32 s31, s65, {c}\ns_add_u32 s31, s31, s64")
            A("buffer_load_dword v1, v7, s[60:63], s31 offen")
        A("s_mov_b64 exec, -1")
    f_touch(OPT.get("ft0", (1, 3)))
    A(f"""
    v_and_b32 v20, 0x13, v18
    v_bfe_u32 v21, v18, 2, 1
    v_lshl_add_u32 v20, v21, 3, v20
    v_bfe_u32 v21, v18, 3, 1
    v_lshl_add_u32 v20, v21, 2, v20
    v_bfe_u32 v21, v20, 1, 3
    v_xor_b32 v21, v21, v17
    v_lshlrev_b32 v22, 7, v20
    v_lshl_add_u32 v24, v21, 4, v22
    v_xor_b32 v25, 32, v24
    v_xor_b32 v26, 64, v24
    v_xor_b32 v27, 0x60, v24
    v_add_u32 v28, {2*RST}, v24
    v_add_u32 v29, {2*RST}, v25
    v_add_u32 v30, {2*RST}, v26
    v_add_u32 v31, {2*RST}, v27
    v_lshl_add_u32 v23, v17, 3, v14
    v_lshlrev_b32 v23, 8, v23
    v_lshl_add_u32 v23, v16, 5, v23
    v_lshl_add_u32 v23, v15, 3, v23
    v_xor_b32 v21, s3, v14
    v_lshl_add_u32 v9, v21, 6, v23
    v_add_u32 v9, {TB}, v9
    """)
    AC = 32
    FB = [112, 136, 160]
    for i in range(80):
        A(f"v_mov_b32 v{AC+i}, 0")
    A("""
    s_lshl_b32 s33, s27, 2
    s_add_u32 s33, s33, s3
    s_lshl_b32 s33, s33, 5
    """)
    for rt in range(5):
        A(f"""
        s_add_u32 s34, s30, {32*rt}
        s_lshr_b32 s31, s34, 9
        s_bfe_u32 s32, s34, 0x50004
        s_add_u32 s32, s32, s33
        s_mul_i32 s32, s32, 10
        s_add_u32 s32, s32, s31
        s_lshl_b32 s32, s32, 10
        s_add_u32 s{36+2*rt}, s32, {WF_OFF:#x}
        s_add_u32 s{37+2*rt}, s32, {WF_OFF + 10240:#x}
        """)
    A("s_waitcnt lgkmcnt(0)")
    srd(A, 56, 18, 19, WS_SIZE)
    ST = ST0.fork()
    ST.stamp("issued")

    def f_reads(kk):
        c, s_ = kk // 4, kk % 4
        st = c % D
        b = FB[kk % 3]
        a = 24 + s_ + (4 if st >= 2 else 0)
        L = []
        for j in range(2):
            L.append(f"ds_read_b64_tr_b16 {vr(b+20+2*j, 2)}, v9 offset:{st*TST + s_*4096 + j*1024}")
        for rt in range(5):
            L.append(f"ds_read_b128 {vr(b+4*rt)}, v{a} offset:{(st % 2)*RST + rt*4096}")
        return L

    def f_mfmas(kk):
        b = FB[kk % 3]
        return [f"v_mfma_f32_32x32x16_bf16 {vr(AC+16*rt,16)}, {vr(b+4*rt)}, {vr(b+20)}, {vr(AC+16*rt,16)}" for rt in range(5)]
    kstep_loop(f_reads, f_mfmas, 7, ST, (0, 1, 2, 4, 6), {k: (lambda v=v: f_touch(v)) for k, v in OPT.get("ftk", {0: (5,), 4: (6,)}).items()})
    ST.stamp("loop_end")
    A("s_nop 7")
    for rt in range(5):
        if rt == 0:
            A("s_cmp_eq_u32 s26, 28\ns_cbranch_scc1 K1F_skip0")
        if rt == 1:
            A.label("K1F_skip0")
        for hf in range(2):
            o = 112 + 8 * rt + 4 * hf
            for d in range(4):
                A(f"v_cvt_pk_bf16_f32 v{o+d}, v{AC+16*rt+8*hf+2*d}, v{AC+16*rt+8*hf+2*d+1}")
            A(f"buffer_store_dwordx4 {vr(o)}, v2, s[56:59], s{36+2*rt+hf} offen{SF}")
    ST.flush(56, 3, 160)
    A("s_endpgm")

    A.label("K1_Z")
    A(f"""
    s_cmp_ge_u32 s3, 4
    s_cbranch_scc1 K1_end
    s_sub_u32 s26, s26, 120
    s_lshl_b32 s26, s26, 2
    s_add_u32 s26, s26, s3
    s_lshl_b32 s29, s26, 14
    s_lshl_b32 s30, s3, 14
    v_xor_b32 v3, 64, v2
    v_xor_b32 v4, 0x80, v2
    v_xor_b32 v5, 0xc0, v2
    v_lshl_add_u32 v23, v17, 3, v14
    v_lshlrev_b32 v23, 10, v23
    v_lshl_add_u32 v23, v16, 5, v23
    v_lshl_add_u32 v23, v15, 3, v23
    v_lshl_add_u32 v24, v14, 6, v23
    v_add_u32 v24, s30, v24
    v_xor_b32 v25, 64, v24
    v_xor_b32 v26, 0x80, v24
    v_xor_b32 v27, 0xc0, v24
    s_mul_i32 s32, s26, 10240
    s_add_u32 s32, s32, {WF_OFF + 9*1024:#x}
    s_waitcnt lgkmcnt(0)
    """)
    srd(A, 48, 10, 11, 0x80000)
    srd(A, 56, 18, 19, WS_SIZE)
    for k in range(16):
        A(f"s_add_u32 m0, s30, {k*1024}\ns_add_u32 s31, s29, {k*1024}")
        A(f"buffer_load_dwordx4 v{2 + k % 4}, s[48:51], s31 offen lds")
    A("s_waitcnt vmcnt(0)")
    for g in range(4):
        for i in range(4):
            ntile = 4 * g + i
            A(f"ds_read_b64_tr_b16 v[{32+4*ntile}:{33+4*ntile}], v{24+i} offset:{g*256}")
            A(f"ds_read_b64_tr_b16 v[{34+4*ntile}:{35+4*ntile}], v{24+i} offset:{g*256 + 4096}")
        A("s_waitcnt lgkmcnt(0)")
        for i in range(4):
            ntile = 4 * g + i
            A(f"s_add_u32 s31, s32, {ntile*327680}\nbuffer_store_dwordx4 {vr(32+4*ntile)}, v2, s[56:59], s31 offen{SF}")
    A.label("K1_end")
    A("s_endpgm")


def kd(A, name, vgpr, accum, sgpr=102):
    A.raw(f""".p2align 6
.amdhsa_kernel {name}
  .amdhsa_next_free_vgpr {vgpr}
  .amdhsa_next_free_sgpr {sgpr}
  .amdhsa_accum_offset {accum}
  .amdhsa_group_segment_fixed_size 0
  .amdhsa_kernarg_size 72
  .amdhsa_user_sgpr_count 2
  .amdhsa_user_sgpr_kernarg_segment_ptr 1
  .amdhsa_system_sgpr_workgroup_id_x 1
.end_amdhsa_kernel""")


def main():
    for a in sys.argv[1:]:
        k, v = a.split("=")
        OPT[k] = eval(v)
    A = Asm()
    A.raw("; @launch kernel=k1_kernel grid=(256,1,1) block=(384,1,1) lds=147456")
    for _ in range(OPT.get("k2rep", 1)):
        A.raw("; @launch kernel=k2_kernel grid=(256,1,1) block=(%d,1,1) lds=65536" % (320 if OPT.get("hw", 0) else 256))
    A.raw('.amdgcn_target "amdgcn-amd-amdhsa--gfx950"')
    A.raw(".text")
    gen_k1(A)
    gen_k2(A)
    A.raw('.section .rodata,"a"')
    kd(A, "k1_kernel", 184, 184)
    kd(A, "k2_kernel", 256, 256)
    sys.stdout.write(A.text())


if __name__ == "__main__":
    main()
```
